```python
import torch

def _softmax(x, axis=-1):
    return torch.softmax(x, dim=axis)
def _gelu(x):
    return torch.nn.functional.gelu(x, approximate="tanh")
def _silu(x):
    return torch.nn.functional.silu(x)
def _sigmoid(x):
    return torch.sigmoid(x)
def _layernorm(x, axis=-1, eps=1e-5):
    m = x.mean(dim=axis, keepdim=True)
    v = x.var(dim=axis, keepdim=True, unbiased=False)
    return (x - m) / torch.sqrt(v + eps)
def _scatter_add(tgt, idx, src, axis=0):
    return tgt.clone().index_add_(axis, idx, src)
def _segment_sum(src, seg, n):
    out = torch.zeros((n,) + src.shape[1:], dtype=src.dtype)
    return out.index_add_(0, seg, src)
def _pad(x, pw):
    flat = tuple(v for pair in reversed(pw) for v in pair)
    return torch.nn.functional.pad(x, flat)

kernel_name = 'concat_heads__grouped_kv_mqa__ssm_conv_h3__prompt'

def setup_inputs():

    _w = (lambda a: (lambda t: t.to(torch.bfloat16) if t.is_floating_point() else t)(torch.as_tensor(a)))
    def _A_setup():
        B, S, D, H = 1, 2048, 512, 32
        Dh = D // H
        return {
            "x": _w((lambda *s: torch.randn(*s, dtype=torch.bfloat16) * 0.05)(B, S, D)),
            "wq": _w((lambda *s: torch.randn(*s, dtype=torch.bfloat16) * 0.8)(D, H * Dh)),
            "wk": _w((lambda *s: torch.randn(*s, dtype=torch.bfloat16) * 0.8)(D, Dh)),
            "wv": _w((lambda *s: torch.randn(*s, dtype=torch.bfloat16) * 0.05)(D, Dh)),
            "wo": _w((lambda *s: torch.randn(*s, dtype=torch.bfloat16) * 0.05)(H * Dh, D)),
        }
    _A_in = _A_setup()

    def _B_setup():
        B, S, D = 1, 2048, 512
        ks = 4
        return {
            "q": _w((lambda *s: torch.randn(*s, dtype=torch.bfloat16) * 0.05)(B, S, D)),
            "k": _w((lambda *s: torch.randn(*s, dtype=torch.bfloat16) * 0.2)(B, S, D)),
            "v": _w((lambda *s: torch.randn(*s, dtype=torch.bfloat16) * 0.2)(B, S, D)),
            "shift_k": _w((lambda *s: torch.randn(*s, dtype=torch.bfloat16) * 0.2)(D, ks) * 0.5),
            "ssm_k": _w((lambda *s: torch.randn(*s, dtype=torch.bfloat16) * 0.4)(D, S) * (1.0 / S ** 0.5)),
            "ssm_D": _w((lambda *s: torch.randn(*s, dtype=torch.bfloat16) * 0.2)(D)),
        }
    _B_in = _B_setup()

    return {
        "A_x": _A_in["x"],
        "A_wq": _A_in["wq"],
        "A_wk": _A_in["wk"],
        "A_wv": _A_in["wv"],
        "A_wo": _A_in["wo"],
        "B_q": _B_in["q"],
        "B_k": _B_in["k"],
        "B_v": _B_in["v"],
        "B_shift_k": _B_in["shift_k"],
        "B_ssm_k": _B_in["ssm_k"],
        "B_ssm_D": _B_in["ssm_D"],
    }

def reference(A_x, A_wq, A_wk, A_wv, A_wo, B_q, B_k, B_v, B_shift_k, B_ssm_k, B_ssm_D):
    def _A_ref(x, wq, wk, wv, wo):
        B, S, D = x.shape
        H = 32
        Dh = D // H
        q = (lambda x, *d: x.permute(*d))((x @ wq).reshape(B, S, H, Dh), 0, 2, 1, 3)
        k = x @ wk
        v = x @ wv
        scores = torch.einsum("bhqd,bkd->bhqk", q, k) * (Dh ** -0.5)
        p = _softmax(scores, axis=-1)
        o = torch.einsum("bhqk,bkd->bhqd", p, v)
        return (lambda x, *d: x.permute(*d))(o, 0, 2, 1, 3).reshape(B, S, H * Dh) @ wo

    def _B_ref(q, k, v, shift_k, ssm_k, ssm_D):
        B, S, D = q.shape
        ks = shift_k.shape[-1]
        k_pad = _pad(k, ((0, 0), (ks - 1, 0), (0, 0)))
        k_shift = torch.zeros_like(k)
        for t in range(ks):
            k_shift = k_shift + k_pad[:, t:t + S, :] * shift_k[:, ks - 1 - t][None, None, :]
        kv = k_shift * v
        L = 2 * S
        kv_pad = _pad(kv, ((0, 0), (0, S), (0, 0)))
        kf_pad = _pad(ssm_k, ((0, 0), (0, S)))
        kv_f = (lambda x, axes=(-2,-1): torch.fft.rfft2(x.float(), dim=axes))(kv_pad[:, None, :, :], axes=(1, 2))
        kf_f = (lambda x, axes=(-2,-1): torch.fft.rfft2(x.float(), dim=axes))(kf_pad[:, None, :], axes=(1, 2))
        kf_f = (lambda x, *d: x.permute(*d))(kf_f, 1, 2, 0)
        y_f = kv_f * kf_f[None, :, :, :]
        y = (lambda x, s, axes=(-2,-1): torch.fft.irfft2(x, s=s, dim=axes).to(torch.bfloat16))(y_f, (1, L), axes=(1, 2))[:, 0, :S, :]
        y = y + kv * ssm_D[None, None, :]
        return q * y

    a = _A_ref(A_x, A_wq, A_wk, A_wv, A_wo)
    b = _B_ref(B_q, B_k, B_v, B_shift_k, B_ssm_k, B_ssm_D)
    return torch.concatenate([a, b], axis=-1)
```

```python
class Asm:
    def __init__(self):
        self.lines = []
        self.nlab = 0

    def __call__(self, s):
        for ln in s.strip("\n").split("\n"):
            self.lines.append("    " + ln.strip())

    def label(self, name):
        self.lines.append(name + ":")

    def raw(self, s):
        self.lines.append(s)

    def newlabel(self, base):
        self.nlab += 1
        return "L_%s_%d" % (base, self.nlab)

    def text(self):
        return "\n".join(self.lines) + "\n"


def vr(base, n=1):
    if n == 1:
        return "v%d" % base
    return "v[%d:%d]" % (base, base + n - 1)


def sr(base, n=1):
    if n == 1:
        return "s%d" % base
    return "s[%d:%d]" % (base, base + n - 1)


def srd(a, dst, ptr, nbytes, add_lo=None):
    if add_lo is None:
        a("s_mov_b32 s%d, s%d" % (dst, ptr))
        a("s_mov_b32 s%d, s%d" % (dst + 1, ptr + 1))
    else:
        off = add_lo if isinstance(add_lo, str) else "0x%x" % add_lo
        a("s_add_u32 s%d, s%d, %s" % (dst, ptr, off))
        a("s_addc_u32 s%d, s%d, 0" % (dst + 1, ptr + 1))
    a("s_mov_b32 s%d, 0x%x" % (dst + 2, nbytes))
    a("s_mov_b32 s%d, 0x00020000" % (dst + 3))


def kd(name, vgpr, sgpr=102, accum=None):
    if accum is None:
        accum = (vgpr + 3) // 4 * 4
    return """.p2align 6
.amdhsa_kernel %s
  .amdhsa_next_free_vgpr %d
  .amdhsa_next_free_sgpr %d
  .amdhsa_accum_offset %d
  .amdhsa_group_segment_fixed_size 0
  .amdhsa_kernarg_size 112
  .amdhsa_user_sgpr_count 2
  .amdhsa_user_sgpr_kernarg_segment_ptr 1
  .amdhsa_system_sgpr_workgroup_id_x 1
.end_amdhsa_kernel
""" % (name, vgpr, sgpr, accum)
```

```python
import sys, os
sys.path.insert(0, os.path.dirname(__file__))
from asmlib import *

WS_KV = 0
WS_KVT = 0x100000
WS_O = 0x300000
WS_Z = 0x500000
WS_BYTES = 0x700000

P_X, P_WQ, P_WK, P_WV, P_WO, P_BQ, P_BK, P_BV, P_SH, P_SSMK, P_SSMD, P_OUT, P_DBG, P_WS = [8 + 2 * i for i in range(14)]
XROW = 1056


def prologue(a, endlab):
    a("""
    s_cmp_ge_u32 s2, 256
    s_cbranch_scc1 %s
    s_load_dwordx16 s[8:23], s[0:1], 0
    s_load_dwordx8 s[24:31], s[0:1], 64
    s_load_dwordx4 s[32:35], s[0:1], 96
    v_lshrrev_b32 v1, 6, v0
    v_and_b32 v0, 63, v0
    s_and_b32 s4, s2, 31
    v_readfirstlane_b32 s3, v1
    s_lshr_b32 s5, s2, 5
    """ % endlab)


def dma(a, ldsaddr, voff, srdreg, soff, extra=""):
    a("s_mov_b32 m0, %s" % (ldsaddr if isinstance(ldsaddr, str) else "0x%x" % ldsaddr))
    a("s_nop 0")
    a("buffer_load_dwordx4 %s, s[%d:%d], %s offen %s lds" % (voff, srdreg, srdreg + 3, soff, extra))


def gen_k1(a):
    a.label("k1_kernel")
    prologue(a, "L_k1_end")
    a("s_waitcnt lgkmcnt(0)")
    srd(a, 48, P_WS, WS_BYTES)
    a("s_cmp_eq_u32 s3, 8")
    a("s_cbranch_scc1 L_k1_job")
    LT = 34816
    srd(a, 36, P_BK, 0x200000)
    srd(a, 40, P_BV, 0x200000)
    srd(a, 44, P_SH, 4096)
    a("""
    v_lshrrev_b32 v1, 3, v0
    v_and_b32 v2, 7, v0
    s_lshl_b32 s6, s4, 6
    s_lshl_b32 s7, s3, 3
    s_add_u32 s6, s6, s7
    s_lshl_b32 s60, s6, 10
    s_lshl_b32 s7, s5, 7
    s_add_u32 s60, s60, s7
    v_lshlrev_b32 v3, 10, v1
    v_lshl_add_u32 v3, v2, 4, v3
    v_add_u32 v3, s60, v3
    v_subrev_u32 v4, 0x400, v3
    v_subrev_u32 v5, 0x800, v3
    v_subrev_u32 v6, 0xc00, v3
    s_lshl_b32 s61, s5, 9
    v_lshlrev_b32 v7, 6, v2
    buffer_load_dwordx4 v[8:11], v3, s[36:39], 0 offen
    buffer_load_dwordx4 v[12:15], v4, s[36:39], 0 offen
    buffer_load_dwordx4 v[16:19], v5, s[36:39], 0 offen
    buffer_load_dwordx4 v[20:23], v6, s[36:39], 0 offen
    buffer_load_dwordx4 v[24:27], v3, s[40:43], 0 offen
    buffer_load_dwordx4 v[28:31], v7, s[44:47], s61 offen
    buffer_load_dwordx4 v[32:35], v7, s[44:47], s61 offen offset:16
    buffer_load_dwordx4 v[36:39], v7, s[44:47], s61 offen offset:32
    buffer_load_dwordx4 v[40:43], v7, s[44:47], s61 offen offset:48
    s_mov_b32 s62, 0x05040100
    s_mov_b32 s63, 0x07060302
    """)
    a("""
    s_lshl_b32 s7, s3, 10
    s_add_u32 s7, s7, %d
    v_sub_u32 v44, 7, v1
    v_lshlrev_b32 v44, 7, v44
    v_lshl_add_u32 v44, v2, 4, v44
    v_add_u32 v44, s7, v44
    v_lshrrev_b32 v45, 2, v0
    v_and_b32 v45, 3, v45
    v_lshlrev_b32 v45, 7, v45
    v_lshrrev_b32 v46, 4, v0
    v_lshl_add_u32 v45, v46, 5, v45
    v_and_b32 v46, 3, v0
    v_lshl_add_u32 v45, v46, 3, v45
    v_add_u32 v45, s7, v45
    """ % LT)
    a("""
    s_lshl_b32 s64, s5, 18
    s_lshl_b32 s7, s6, 1
    s_add_u32 s64, s64, s7
    s_add_u32 s64, s64, 0x%x
    v_lshlrev_b32 v47, 12, v0
    s_waitcnt vmcnt(0)
    """ % WS_KVT)
    for d in range(4):
        a("v_perm_b32 v%d, v%d, v%d, s62" % (48 + 4 * d, 12 + d, 8 + d))
        a("v_perm_b32 v%d, v%d, v%d, s62" % (49 + 4 * d, 20 + d, 16 + d))
        a("v_perm_b32 v%d, v%d, v%d, s63" % (50 + 4 * d, 12 + d, 8 + d))
        a("v_perm_b32 v%d, v%d, v%d, s63" % (51 + 4 * d, 20 + d, 16 + d))
    for c in range(8):
        d, hi = c >> 1, c & 1
        a("v_dot2_f32_bf16 v%d, v%d, v%d, 0" % (64 + c, 48 + 4 * d + 2 * hi, 28 + 2 * c))
    for c in range(8):
        d, hi = c >> 1, c & 1
        a("v_dot2_f32_bf16 v%d, v%d, v%d, v%d" % (64 + c, 49 + 4 * d + 2 * hi, 29 + 2 * c, 64 + c))
    for d in range(4):
        a("v_lshlrev_b32 v%d, 16, v%d" % (72 + 2 * d, 24 + d))
        a("v_and_b32 v%d, 0xffff0000, v%d" % (73 + 2 * d, 24 + d))
    for c in range(8):
        a("v_mul_f32 v%d, v%d, v%d" % (64 + c, 64 + c, 72 + c))
    for d in range(4):
        a("v_cvt_pk_bf16_f32 v%d, v%d, v%d" % (80 + d, 64 + 2 * d, 65 + 2 * d))
    a("""
    ds_write_b128 v44, v[80:83]
    s_waitcnt lgkmcnt(0)
    ds_read_b64_tr_b16 v[84:85], v45
    ds_read_b64_tr_b16 v[86:87], v45 offset:512
    s_waitcnt lgkmcnt(0)
    buffer_store_dwordx4 v[84:87], v47, s[48:51], s64 offen
    s_endpgm
    """)
    a.label("L_k1_job")
    XB, WB = 0, 17408
    srd(a, 36, P_X, 0x200000)
    a("""
    s_and_b32 s6, s5, 1
    s_cmp_eq_u32 s6, 0
    s_cselect_b32 s40, s%d, s%d
    s_cselect_b32 s41, s%d, s%d
    s_mov_b32 s42, 16384
    s_mov_b32 s43, 0x00020000
    s_lshr_b32 s7, s5, 1
    s_lshl_b32 s60, s4, 6
    s_lshl_b32 s61, s7, 4
    s_add_u32 s60, s60, s61
    s_lshl_b32 s60, s60, 10
    v_lshlrev_b32 v1, 4, v0
    """ % (P_WK, P_WV, P_WK + 1, P_WV + 1))
    for r in range(16):
        dma(a, XB + r * XROW, "v1", 36, "s60")
        a("s_add_u32 s60, s60, 0x400")
        a("s_mov_b32 s61, %d" % (r * 1024))
        dma(a, WB + r * 1024, "v1", 40, "s61")
    a("""
    v_and_b32 v2, 15, v0
    v_lshrrev_b32 v3, 4, v0
    v_mul_u32_u24 v4, %d, v2
    v_lshl_add_u32 v4, v3, 4, v4
    v_lshlrev_b32 v5, 8, v3
    v_lshl_add_u32 v5, v2, 3, v5
    v_add_u32 v5, %d, v5
    """ % (XROW, WB))
    a("""
    v_lshrrev_b32 v6, 1, v3
    v_lshlrev_b32 v6, 9, v6
    v_lshl_add_u32 v6, v2, 4, v6
    v_and_b32 v7, 1, v3
    v_lshl_add_u32 v6, v7, 3, v6
    s_lshl_b32 s60, s4, 1
    s_lshr_b32 s61, s5, 2
    s_add_u32 s60, s60, s61
    s_lshl_b32 s60, s60, 11
    s_lshl_b32 s61, s6, 10
    s_add_u32 s60, s60, s61
    s_and_b32 s61, s7, 1
    s_lshl_b32 s61, s61, 8
    s_add_u32 s60, s60, s61
    s_waitcnt vmcnt(0)
    s_cmp_eq_u32 s6, 0
    s_cbranch_scc0 L_k1_jobv
    """)
    for kind in (0, 1):
        if kind == 1:
            a.label("L_k1_jobv")
        XF, WF, ACC = 16, 48, 8

        def rd(s):
            b = s % 8
            a("ds_read_b128 %s, v4 offset:%d" % (vr(XF + 4 * b, 4), 64 * s))
            a("ds_read_b64_tr_b16 %s, v5 offset:%d" % (vr(WF + 4 * b, 2), 1024 * s))
            a("ds_read_b64_tr_b16 %s, v5 offset:%d" % (vr(WF + 4 * b + 2, 2), 1024 * s + 128))
        for s in range(4):
            rd(s)
        for s in range(16):
            if s + 4 < 16:
                rd(s + 4)
                a("s_waitcnt lgkmcnt(12)")
            else:
                a("s_waitcnt lgkmcnt(%d)" % (3 * (15 - s)))
            b = s % 8
            A, B = (WF, XF) if kind == 0 else (XF, WF)
            a("v_mfma_f32_16x16x32_bf16 %s, %s, %s, %s" % (vr(ACC, 4), vr(A + 4 * b, 4), vr(B + 4 * b, 4), "0" if s == 0 else vr(ACC, 4)))
        a("""
        s_nop 7
        v_cvt_pk_bf16_f32 v12, v8, v9
        v_cvt_pk_bf16_f32 v13, v10, v11
        buffer_store_dwordx2 v[12:13], v6, s[48:51], s60 offen
        s_endpgm
        """)
    a.label("L_k1_end")
    a("s_endpgm")


def gemm16(a, vW, vB, boffs, ACC, XF, WF, second):
    def rd(s):
        b = s % 4
        a("ds_read_b64_tr_b16 %s, %s offset:%d" % (vr(WF + 4 * b, 2), vW, 4096 * s))
        a("ds_read_b64_tr_b16 %s, %s offset:%d" % (vr(WF + 4 * b + 2, 2), vW, 4096 * s + second))
        a("ds_read_b128 %s, %s offset:%d" % (vr(XF + 8 * b, 4), vB, boffs(s, 0)))
        a("ds_read_b128 %s, %s offset:%d" % (vr(XF + 8 * b + 4, 4), vB, boffs(s, 1)))
    for s in range(2):
        rd(s)
    for s in range(16):
        if s + 2 < 16:
            rd(s + 2)
            a("s_waitcnt lgkmcnt(8)")
        else:
            a("s_waitcnt lgkmcnt(%d)" % (4 * (15 - s)))
        b = s % 4
        for j in range(2):
            a("v_mfma_f32_16x16x32_bf16 %s, %s, %s, %s" % (vr(ACC + 4 * j, 4), vr(WF + 4 * b, 4), vr(XF + 8 * b + 4 * j, 4), "0" if s == 0 else vr(ACC + 4 * j, 4)))


XS = 30720
WSL = 98304
HB = 131072
HCH = 8448
XB = 147968
XCH = 6144


def gen_k2(a):
    a.label("k2_kernel")
    prologue(a, "L_k2_end")
    a("v_lshlrev_b32 v1, 4, v0")
    a("s_waitcnt lgkmcnt(0)")
    srd(a, 48, P_WS, WS_BYTES)
    a("s_cmp_ge_u32 s3, 8")
    a("s_cbranch_scc1 L_k2_aux")
    srd(a, 36, P_X, 0x200000)
    srd(a, 40, P_WQ, 0x80000)
    a("""
    s_lshl_b32 s6, s4, 6
    s_lshl_b32 s7, s3, 3
    s_add_u32 s6, s6, s7
    s_lshl_b32 s60, s6, 10
    s_mul_i32 s61, s7, %d
    s_add_u32 s61, s61, %d
    """ % (XROW, XS))
    for r in range(8):
        dma(a, "s61", "v1", 36, "s60")
        a("s_add_u32 s60, s60, 0x400")
        a("s_add_u32 s61, s61, %d" % XROW)
    a("""
    v_lshrrev_b32 v2, 3, v0
    v_lshrrev_b32 v3, 1, v0
    v_and_b32 v3, 3, v3
    v_lshrrev_b32 v4, 4, v0
    v_and_b32 v4, 1, v4
    v_xor_b32 v3, v3, v4
    v_xor_b32 v5, 2, v3
    v_and_b32 v6, 1, v0
    v_lshlrev_b32 v2, 10, v2
    v_lshl_add_u32 v2, v6, 4, v2
    v_lshl_add_u32 v3, v3, 5, v2
    v_lshl_add_u32 v5, v5, 5, v2
    s_lshl_b32 s60, s3, 16
    s_lshl_b32 s7, s5, 7
    s_add_u32 s60, s60, s7
    s_lshl_b32 s61, s3, 13
    s_add_u32 s61, s61, %d
    """ % WSL)
    for i in range(8):
        dma(a, "s61", "v3" if i % 2 == 0 else "v5", 40, "s60")
        a("s_add_u32 s60, s60, 0x2000")
        a("s_add_u32 s61, s61, 0x400")
    a("""
    s_and_b32 s62, s3, 3
    s_lshr_b32 s63, s3, 2
    v_lshrrev_b32 v2, 4, v0
    v_lshrrev_b32 v3, 2, v0
    v_and_b32 v3, 3, v3
    v_and_b32 v4, 3, v0
    v_lshl_add_u32 v5, v2, 3, v3
    v_lshlrev_b32 v5, 7, v5
    v_lshl_add_u32 v5, v4, 3, v5
    v_lshrrev_b32 v6, 1, v3
    v_and_b32 v7, 1, v2
    v_lshl_add_u32 v6, v7, 1, v6
    v_xor_b32 v6, s62, v6
    v_lshl_add_u32 v5, v6, 5, v5
    v_add_u32 v5, %d, v5
    v_and_b32 v6, 15, v0
    v_mul_u32_u24 v6, %d, v6
    v_lshl_add_u32 v6, v2, 4, v6
    s_mul_i32 s7, s63, %d
    s_add_u32 s7, s7, %d
    v_add_u32 v6, s7, v6
    s_waitcnt vmcnt(0)
    s_barrier
    """ % (WSL, XROW, 32 * XROW, XS))
    gemm16(a, "v5", "v6", lambda s, j: 64 * s + 16 * XROW * j, 8, 16, 48, 512)
    a("s_barrier")
    Q, KA, KB, V0A, V1A, V0B, V1B, SA, SB, O, NM = 64, 68, 72, 76, 80, 84, 88, 96, 112, 128, 144
    IDX, AD = 2, 1
    a("""
    s_mov_b32 s64, 0xffff
    s_mov_b32 s65, 0xffff
    v_mov_b32 v%d, 0xdddddddd
    """ % IDX)
    for i in range(16):
        a("v_mov_b32 v%d, 0x3f803f80" % (V0A + i))
    a("s_mov_b32 s7, 0x3eb8aa3b")
    for i in range(8):
        a("v_mul_f32 v%d, s7, v%d" % (8 + i, 8 + i))
    for i in range(4):
        a("v_cvt_pk_bf16_f32 v%d, v%d, v%d" % (Q + i, 8 + 2 * i, 9 + 2 * i))
    a("""
    s_mov_b32 s68, 0
    ds_read_b128 %s, v%d
    s_nop 0
    v_permlane16_swap_b32 v%d, v%d
    v_permlane16_swap_b32 v%d, v%d
    s_waitcnt lgkmcnt(0)
    v_mfma_f32_32x32x16_bf16 %s, %s, %s, 0
    s_nop 7
    s_nop 3
    """ % (vr(KA, 4), AD, Q, Q + 2, Q + 1, Q + 3, vr(SA, 16), vr(KA, 4), vr(Q, 4)))
    a("v_max3_f32 v3, v%d, v%d, v%d" % (SA, SA + 1, SA + 2))
    for i in range(3, 15, 2):
        a("v_max3_f32 v3, v3, v%d, v%d" % (SA + i, SA + i + 1))
    a("v_max_f32 v3, v3, v%d" % (SA + 15))
    a.label("L_k2_havemax")
    a("""
    v_mov_b32 v4, v3
    s_nop 1
    v_permlane32_swap_b32 v3, v4
    s_nop 1
    v_max_f32 v3, v3, v4
    """)
    for i in range(16):
        a("v_sub_f32 v%d, 0, v3" % (NM + i))
    a("v_lshlrev_b32 v%d, 4, v0" % AD)
    for i in range(16):
        a("v_mov_b32 v%d, 0" % (O + i))
    for i in range(8):
        a("v_mov_b32 v%d, 0" % (SB + 8 + i))
    a("""
    ds_read_b128 %s, v%d
    ds_read_b128 %s, v%d offset:2048
    s_mov_b64 exec, s[64:65]
    ds_read_b128 %s, v%d offset:1024
    ds_read_b128 %s, v%d offset:1280
    s_mov_b64 exec, -1
    s_waitcnt lgkmcnt(0)
    v_mfma_f32_32x32x16_bf16 %s, %s, %s, %s
    ds_read_b128 %s, v%d offset:4096
    s_mov_b32 s66, 6
    s_mov_b32 s67, 0
    s_nop 7
    s_nop 1
    """ % (vr(KA, 4), AD, vr(KB, 4), AD, vr(V0A, 4), AD, vr(V1A, 4), AD, vr(SA, 16), vr(KA, 4), vr(Q, 4), vr(NM, 16), vr(KA, 4), AD))

    def half(X, Y, V0X, V0Y, V1Y, KY, n):
        e = lambda i: a("v_exp_f32 v%d, v%d" % (X + i, X + i))
        e(0); e(1)
        a("v_smfmac_f32_32x32x32_bf16 %s, %s, %s, v%d" % (vr(O, 16), vr(V1Y, 4), vr(Y + 8, 8), IDX))
        for i in range(2, 7):
            e(i)
        a("v_mfma_f32_32x32x16_bf16 %s, %s, %s, %s" % (vr(Y, 16), vr(KY, 4), vr(Q, 4), vr(NM, 16)))
        a("s_mov_b64 exec, s[64:65]")
        a("ds_read_b128 %s, v%d offset:%d" % (vr(V0Y, 4), AD, (n + 1) * 2048 + 1024))
        a("ds_read_b128 %s, v%d offset:%d" % (vr(V1Y, 4), AD, (n + 1) * 2048 + 1280))
        a("s_mov_b64 exec, -1")
        a("ds_read_b128 %s, v%d offset:%d" % (vr(KY, 4), AD, (n + 3) * 2048))
        for i in range(7, 12):
            e(i)
        a("s_waitcnt lgkmcnt(3)")
        a("v_smfmac_f32_32x32x32_bf16 %s, %s, %s, v%d" % (vr(O, 16), vr(V0X, 4), vr(X, 8), IDX))
        for i in range(12, 16):
            e(i)
    a.raw(".p2align 6")
    a.label("L_k2_loop")
    half(SA, SB, V0A, V0B, V1B, KB, 0)
    half(SB, SA, V0B, V0A, V1A, KA, 1)
    a("""
    v_add_u32 v%d, 0x1000, v%d
    s_sub_u32 s66, s66, 1
    s_cmp_lg_u32 s66, 0
    s_cbranch_scc1 L_k2_loop
    s_cmp_lg_u32 s67, 0
    s_cbranch_scc1 L_k2_done
    s_mov_b32 s67, 1
    s_mov_b32 s66, 26
    s_cmp_lg_u32 s68, 0
    s_cbranch_scc1 L_k2_loop
    s_barrier
    s_branch L_k2_loop
    """ % (AD, AD))
    a.label("L_k2_done")
    a("v_smfmac_f32_32x32x32_bf16 %s, %s, %s, v%d" % (vr(O, 16), vr(V1B, 4), vr(SB + 8, 8), IDX))
    a("""
    s_lshl_b32 s6, s4, 1
    s_add_u32 s6, s6, s63
    s_lshl_b32 s6, s6, 5
    s_lshl_b32 s7, s5, 2
    s_add_u32 s6, s6, s7
    s_add_u32 s6, s6, s62
    s_lshl_b32 s6, s6, 10
    s_add_u32 s6, s6, 0x%x
    v_lshlrev_b32 v5, 4, v0
    s_waitcnt lgkmcnt(0)
    s_nop 3
    v_rcp_f32 v3, v%d
    s_mov_b32 s7, 0x5d800000
    v_cmp_nlt_f32 vcc, v%d, s7
    """ % (WS_O, O + 8, O + 8))
    a.lines[-1] = "    v_cmp_ngt_f32 vcc, s7, v%d" % (O + 8)
    a("v_mov_b32 v4, 0x203")
    a.lines[-1] = "    v_mov_b32 v4, 0x207"
    for i in range(8):
        a("v_cmp_class_f32 s[70:71], v%d, v4" % (O + i))
        a("s_or_b64 vcc, vcc, s[70:71]")
    for i in range(8):
        a("v_mul_f32 v%d, v%d, v3" % (8 + i, O + i))
    a("""
    s_cmp_lg_u32 s68, 0
    s_cbranch_scc1 L_k2_store
    s_cbranch_vccnz L_k2_slow
    """)
    a.label("L_k2_store")
    for i in range(4):
        a("v_cvt_pk_bf16_f32 v%d, v%d, v%d" % (16 + i, 8 + 2 * i, 9 + 2 * i))
    a("""
    buffer_store_dwordx4 v[16:19], v5, s[48:51], s6 offen
    s_endpgm
    """)
    a.label("L_k2_slow")
    a("""
    s_mov_b32 s68, 1
    v_lshlrev_b32 v%d, 4, v0
    v_mov_b32 v3, 0xff800000
    s_mov_b32 s66, 64
    """ % AD)
    a.label("L_k2_slowloop")
    a("""
    ds_read_b128 %s, v%d
    s_waitcnt lgkmcnt(0)
    v_mfma_f32_32x32x16_bf16 %s, %s, %s, 0
    v_add_u32 v%d, 0x800, v%d
    s_nop 7
    s_nop 3
    """ % (vr(KA, 4), AD, vr(SA, 16), vr(KA, 4), vr(Q, 4), AD, AD))
    for i in range(0, 16, 2):
        a("v_max3_f32 v3, v3, v%d, v%d" % (SA + i, SA + i + 1))
    a("""
    s_sub_u32 s66, s66, 1
    s_cmp_lg_u32 s66, 0
    s_cbranch_scc1 L_k2_slowloop
    s_branch L_k2_havemax
    """)

    a.label("L_k2_aux")
    a("""
    s_sub_u32 s3, s3, 8
    s_lshl_b32 s60, s3, 10
    """)
    for k in range(8):
        if k == 7:
            a("s_cmp_ge_u32 s3, 2")
            a("s_cbranch_scc1 L_k2_aux_e")
        dma(a, "s60", "v1", 48, "s60")
        a("s_add_u32 s60, s60, 0x1000")
    a.label("L_k2_aux_e")
    a("""
    s_lshr_b32 s62, s3, 1
    s_and_b32 s63, s3, 1
    s_lshl_b32 s6, s2, 1
    s_add_u32 s6, s6, s62
    s_lshl_b32 s7, s6, 12
    """)
    srd(a, 36, P_SSMK, 4096, "s7")
    a("""
    s_load_dword s70, s[36:37], 0
    s_lshl_b32 s61, s2, 2
    s_load_dword s71, s[%d:%d], s61
    s_add_u32 s72, s7, 0x%x
    s_add_u32 s73, s7, 0x%x
    s_mul_i32 s64, s62, %d
    s_add_u32 s64, s64, %d
    s_mul_i32 s65, s62, %d
    s_add_u32 s65, s65, %d
    s_waitcnt vmcnt(0)
    s_barrier
    s_barrier
    s_lshl_b32 s60, s3, 10
    s_add_u32 s60, s60, %d
    """ % (P_SSMD, P_SSMD + 1, WS_KVT, WS_Z, HCH, HB, XCH, XB, XS))
    for k in range(25):
        if k == 24:
            a("s_cmp_ge_u32 s3, 2")
            a("s_cbranch_scc1 L_k2_aux_l")
        dma(a, "s60", "v1", 48, "s60")
        a("s_add_u32 s60, s60, 0x1000")
    a.label("L_k2_aux_l")
    a("""
    s_mul_i32 s60, s63, 4164
    s_add_u32 s60, s60, s64
    s_add_u32 s60, s60, 64
    s_lshl_b32 s61, s63, 1
    s_mov_b32 m0, s60
    s_nop 0
    buffer_load_dwordx4 v1, s[36:39], s61 offen lds
    buffer_load_dwordx4 v1, s[36:39], s61 offen offset:1024 lds
    buffer_load_dwordx4 v1, s[36:39], s61 offen offset:2048 lds
    buffer_load_dwordx4 v1, s[36:39], s61 offen offset:3072 lds
    v_lshlrev_b32 v2, 6, v0
    s_mul_i32 s60, s63, 3072
    s_add_u32 s60, s60, s65
    s_add_u32 s74, s60, 512
    s_lshl_b32 s61, s63, 5
    s_add_u32 s61, s61, s72
    """)
    dma(a, "s74", "v2", 48, "s61")
    a("s_add_u32 s74, s74, 1536")
    a("s_add_u32 s61, s61, 16")
    dma(a, "s74", "v2", 48, "s61")
    a("""
    v_mov_b32 v8, 0
    v_mov_b32 v9, 0
    v_mov_b32 v10, 0
    v_mov_b32 v11, 0
    v_and_b32 v3, 31, v0
    v_lshrrev_b32 v4, 5, v0
    v_mul_u32_u24 v5, 1536, v4
    v_lshl_add_u32 v5, v3, 4, v5
    v_add_u32 v5, s60, v5
    ds_write_b128 v5, v[8:11]
    """)
    a("""
    s_mul_i32 s60, s63, 4160
    s_add_u32 s60, s60, s64
    v_lshlrev_b32 v5, 2, v0
    v_add_u32 v5, s60, v5
    s_waitcnt lgkmcnt(0)
    s_lshl_b32 s70, s70, 16
    v_mov_b32 v6, s70
    v_cmp_eq_u32 vcc, 16, v0
    s_add_u32 s61, s63, 16
    s_nop 1
    v_cndmask_b32 v6, 0, v6, vcc
    v_cmp_gt_u32 vcc, s61, v0
    s_nop 1
    s_mov_b64 exec, vcc
    ds_write_b32 v5, v6
    s_mov_b64 exec, -1
    """)
    a("""
    v_lshrrev_b32 v5, 2, v3
    v_and_b32 v5, 1, v5
    v_lshlrev_b32 v5, 4, v5
    v_lshrrev_b32 v6, 4, v3
    v_lshl_add_u32 v5, v6, 3, v5
    v_lshrrev_b32 v6, 3, v3
    v_and_b32 v6, 1, v6
    v_lshlrev_b32 v6, 2, v6
    v_sub_u32 v5, v5, v6
    v_and_b32 v6, 3, v3
    v_sub_u32 v5, v5, v6
    v_lshlrev_b32 v6, 3, v4
    v_sub_u32 v5, v5, v6
    v_subrev_u32 v5, 16, v5
    v_and_b32 v6, 1, v5
    v_mul_u32_u24 v6, 4162, v6
    v_lshl_add_u32 v5, v5, 1, v6
    v_add_u32 v5, 64, v5
    v_add_u32 v5, s64, v5
    v_mul_u32_u24 v6, 1536, v4
    v_lshl_add_u32 v6, v3, 4, v6
    s_lshl_b32 s60, s63, 9
    s_add_u32 s60, s60, s65
    s_add_u32 s60, s60, %d
    v_add_u32 v6, s60, v6
    s_lshl_b32 s66, 4, s63
    s_waitcnt vmcnt(0) lgkmcnt(0)
    s_barrier
    """ % ((32 - 9) * 16))
    ACC, TF, XF = 16, 32, 64

    def crd(mm):
        b = mm % 4
        for kk in range(2):
            o = 8 * (2 * mm - kk + 1)
            a("ds_read2_b32 %s, v5 offset0:%d offset1:%d" % (vr(TF + 8 * b + 4 * kk, 2), o, o + 1))
            a("ds_read2_b32 %s, v5 offset0:%d offset1:%d" % (vr(TF + 8 * b + 4 * kk + 2, 2), o + 2, o + 3))
            a("ds_read_b128 %s, v6 offset:%d" % (vr(XF + 8 * b + 4 * kk, 4), kk * 3072 + (9 - mm) * 16))
    for i in range(16):
        a("v_mov_b32 v%d, 0" % (ACC + i))
    crd(0)
    crd(1)
    a.label("L_k2_conv")
    for mm in range(8):
        a("s_waitcnt lgkmcnt(6)")
        b = mm % 4
        for kk in range(2):
            a("v_mfma_f32_32x32x16_bf16 %s, %s, %s, %s" % (vr(ACC, 16), vr(TF + 8 * b + 4 * kk, 4), vr(XF + 8 * b + 4 * kk, 4), vr(ACC, 16)))
        crd(mm + 2)
    a("""
    v_add_u32 v5, 0x200, v5
    v_subrev_u32 v6, 0x80, v6
    s_sub_u32 s66, s66, 1
    s_cmp_lg_u32 s66, 0
    s_cbranch_scc1 L_k2_conv
    """)
    a("""
    v_mul_u32_u24 v6, 3072, v4
    v_lshl_add_u32 v6, v3, 4, v6
    s_lshl_b32 s60, s63, 9
    s_add_u32 s60, s60, s65
    s_add_u32 s60, s60, 512
    v_add_u32 v6, s60, v6
    s_waitcnt lgkmcnt(0)
    ds_read_b128 v[32:35], v6
    ds_read_b128 v[36:39], v6 offset:1536
    s_lshl_b32 s60, s62, 4
    s_lshr_b32 s71, s71, s60
    s_lshl_b32 s71, s71, 16
    v_lshlrev_b32 v7, 6, v3
    v_lshl_add_u32 v7, v4, 5, v7
    s_lshl_b32 s60, s63, 11
    s_add_u32 s73, s73, s60
    s_waitcnt lgkmcnt(0)
    """)
    for d in range(8):
        a("v_lshlrev_b32 v%d, 16, v%d" % (40 + 2 * d, 32 + d))
        a("v_and_b32 v%d, 0xffff0000, v%d" % (41 + 2 * d, 32 + d))
    for i in range(16):
        a("v_fmac_f32 v%d, s71, v%d" % (ACC + i, 40 + i))
    for d in range(8):
        a("v_cvt_pk_bf16_f32 v%d, v%d, v%d" % (32 + d, ACC + 2 * d, ACC + 2 * d + 1))
    a("""
    buffer_store_dwordx4 v[32:35], v7, s[48:51], s73 offen
    buffer_store_dwordx4 v[36:39], v7, s[48:51], s73 offen offset:16
    """)
    a.label("L_k2_end")
    a("s_endpgm")


def gen_k3(a):
    OB, ZB = 65536, 131072
    a.label("k3_kernel")
    prologue(a, "L_k3_end")
    a("v_lshlrev_b32 v1, 4, v0")
    a("s_waitcnt lgkmcnt(0)")
    srd(a, 48, P_WS, WS_BYTES)
    srd(a, 44, P_OUT, 0x400000)
    a("s_cmp_ge_u32 s3, 8")
    a("s_cbranch_scc1 L_k3_gate")
    srd(a, 40, P_WO, 0x80000)
    a("""
    v_lshrrev_b32 v2, 3, v0
    v_lshrrev_b32 v3, 1, v0
    v_and_b32 v3, 3, v3
    v_lshrrev_b32 v4, 4, v0
    v_xor_b32 v3, v3, v4
    v_and_b32 v6, 1, v0
    v_lshlrev_b32 v2, 10, v2
    v_lshl_add_u32 v2, v6, 4, v2
    v_lshl_add_u32 v3, v3, 5, v2
    s_lshl_b32 s60, s3, 16
    s_lshl_b32 s7, s5, 7
    s_add_u32 s60, s60, s7
    s_lshl_b32 s61, s3, 13
    s_lshl_b32 s62, s4, 16
    s_add_u32 s62, s62, s61
    s_add_u32 s62, s62, 0x%x
    s_add_u32 s63, s61, %d
    """ % (WS_O, OB))
    for i in range(8):
        dma(a, "s63", "v1", 48, "s62")
        dma(a, "s61", "v3", 40, "s60")
        a("s_add_u32 s60, s60, 0x2000")
        a("s_add_u32 s61, s61, 0x400")
        a("s_add_u32 s62, s62, 0x400")
        a("s_add_u32 s63, s63, 0x400")
    a("""
    s_and_b32 s62, s3, 3
    s_lshr_b32 s63, s3, 2
    v_lshrrev_b32 v2, 4, v0
    v_lshrrev_b32 v3, 2, v0
    v_and_b32 v3, 3, v3
    v_and_b32 v4, 3, v0
    v_and_b32 v7, 1, v2
    v_lshrrev_b32 v8, 1, v2
    v_lshl_add_u32 v5, v7, 2, v3
    v_lshrrev_b32 v6, 1, v5
    v_lshl_add_u32 v5, v8, 4, v5
    v_lshlrev_b32 v5, 7, v5
    v_lshl_add_u32 v5, v4, 3, v5
    v_xor_b32 v6, s62, v6
    v_lshl_add_u32 v5, v6, 5, v5
    v_and_b32 v6, 15, v0
    v_lshlrev_b32 v6, 4, v6
    v_lshl_add_u32 v6, v7, 9, v6
    v_lshl_add_u32 v6, v8, 10, v6
    s_lshl_b32 s7, s63, 15
    s_add_u32 s7, s7, %d
    v_add_u32 v6, s7, v6
    """ % OB)
    a("""
    v_and_b32 v7, 31, v0
    v_lshlrev_b32 v7, 11, v7
    v_lshrrev_b32 v8, 5, v0
    v_lshl_add_u32 v7, v8, 4, v7
    s_lshl_b32 s6, s4, 17
    s_lshl_b32 s7, s63, 16
    s_add_u32 s6, s6, s7
    s_lshl_b32 s7, s5, 7
    s_add_u32 s6, s6, s7
    s_lshl_b32 s7, s62, 5
    s_add_u32 s6, s6, s7
    s_waitcnt vmcnt(0)
    s_barrier
    """)
    gemm16(a, "v5", "v6", lambda s, j: 2048 * s + 256 * j, 8, 16, 48, 1024)
    a("s_nop 7")
    for i in range(4):
        a("v_cvt_pk_bf16_f32 v%d, v%d, v%d" % (64 + i, 8 + 2 * i, 9 + 2 * i))
    a("""
    s_nop 1
    v_permlane16_swap_b32 v64, v66
    v_permlane16_swap_b32 v65, v67
    s_nop 1
    buffer_store_dwordx4 v[64:67], v7, s[44:47], s6 offen
    s_endpgm
    """)
    a.label("L_k3_gate")
    srd(a, 40, P_BQ, 0x200000)
    a("""
    s_sub_u32 s3, s3, 8
    v_lshrrev_b32 v2, 1, v0
    v_lshlrev_b32 v2, 12, v2
    v_and_b32 v3, 1, v0
    v_lshl_add_u32 v2, v3, 4, v2
    s_lshl_b32 s60, s5, 18
    s_lshl_b32 s7, s4, 7
    s_add_u32 s60, s60, s7
    s_lshl_b32 s7, s3, 5
    s_add_u32 s60, s60, s7
    s_add_u32 s60, s60, 0x%x
    s_lshl_b32 s61, s3, 11
    s_add_u32 s61, s61, %d
    """ % (WS_Z, ZB))
    dma(a, "s61", "v2", 48, "s60")
    a("s_add_u32 s60, s60, 0x20000")
    a("s_add_u32 s62, s61, 0x400")
    dma(a, "s62", "v2", 48, "s60")
    a("""
    v_and_b32 v3, 15, v0
    v_xor_b32 v3, 7, v3
    v_lshrrev_b32 v4, 4, v0
    v_lshlrev_b32 v5, 10, v3
    v_lshl_add_u32 v5, v4, 4, v5
    v_lshlrev_b32 v6, 11, v3
    v_lshl_add_u32 v6, v4, 4, v6
    s_lshl_b32 s6, s4, 6
    s_lshl_b32 s7, s3, 4
    s_add_u32 s6, s6, s7
    s_lshl_b32 s62, s6, 10
    s_lshl_b32 s7, s5, 7
    s_add_u32 s62, s62, s7
    s_lshl_b32 s63, s6, 11
    s_add_u32 s63, s63, s7
    s_add_u32 s63, s63, 0x400
    buffer_load_dwordx4 v[8:11], v5, s[40:43], s62 offen
    buffer_load_dwordx4 v[12:15], v5, s[40:43], s62 offen offset:64
    s_barrier
    v_and_b32 v7, 15, v0
    v_lshlrev_b32 v7, 3, v7
    v_lshl_add_u32 v7, v4, 8, v7
    v_add_u32 v7, s61, v7
    s_waitcnt vmcnt(0)
    ds_read_b64_tr_b16 v[16:17], v7
    ds_read_b64_tr_b16 v[18:19], v7 offset:128
    ds_read_b64_tr_b16 v[20:21], v7 offset:1024
    ds_read_b64_tr_b16 v[22:23], v7 offset:1152
    """)
    for d in range(8):
        a("v_lshlrev_b32 v%d, 16, v%d" % (24 + 2 * d, 8 + d))
        a("v_and_b32 v%d, 0xffff0000, v%d" % (25 + 2 * d, 8 + d))
    a("s_waitcnt lgkmcnt(0)")
    for d in range(8):
        a("v_lshlrev_b32 v%d, 16, v%d" % (40 + 2 * d, 16 + d))
        a("v_and_b32 v%d, 0xffff0000, v%d" % (41 + 2 * d, 16 + d))
    for i in range(16):
        a("v_mul_f32 v%d, v%d, v%d" % (24 + i, 24 + i, 40 + i))
    for d in range(8):
        a("v_cvt_pk_bf16_f32 v%d, v%d, v%d" % (8 + d, 24 + 2 * d, 25 + 2 * d))
    a("""
    buffer_store_dwordx4 v[8:11], v6, s[44:47], s63 offen
    buffer_store_dwordx4 v[12:15], v6, s[44:47], s63 offen offset:64
    """)
    a.label("L_k3_end")
    a("s_endpgm")


def main(path):
    a = Asm()
    hdr = """; concat(MQA attention, H3 ssm-conv) - generated by gen/gen1.py
; @launch kernel=k1_kernel grid=(256,1,1) block=(576,1,1) lds=43008
; @launch kernel=k2_kernel grid=(256,1,1) block=(768,1,1) lds=163840
; @launch kernel=k3_kernel grid=(256,1,1) block=(768,1,1) lds=139264
.amdgcn_target "amdgcn-amd-amdhsa--gfx950"
.text
"""
    for name, g in (("k1_kernel", gen_k1), ("k2_kernel", gen_k2), ("k3_kernel", gen_k3)):
        a.raw(".globl %s\n.p2align 8\n.type %s,@function" % (name, name))
        g(a)
    out = hdr + a.text() + '.section .rodata,"a"\n' + kd("k1_kernel", 96) + kd("k2_kernel", 160) + kd("k3_kernel", 72)
    open(path, "w").write(out)


if __name__ == "__main__":
    main(sys.argv[1] if len(sys.argv) > 1 else "concat_heads__grouped_kv_mqa__ssm_conv_h3__prompt.s")
```

```python
class Asm:
    def __init__(self):
        self.lines = []
        self.nlab = 0
        self.hooks = {}

    def __call__(self, s):
        for ln in s.strip("\n").split("\n"):
            ln = ln.strip()
            if ln.startswith("@"):
                w = ln[1:].split()
                self.hooks[w[0]](self, *w[1:])
                continue
            if ln:
                self.lines.append("    " + ln)

    def label(self, name):
        self.lines.append(name + ":")

    def raw(self, s):
        self.lines.append(s)

    def newlabel(self, base):
        self.nlab += 1
        return "L_%s_%d" % (base, self.nlab)

    def text(self):
        return "\n".join(self.lines) + "\n"


def vr(base, n=1):
    if n == 1:
        return "v%d" % base
    return "v[%d:%d]" % (base, base + n - 1)


def sr(base, n=1):
    if n == 1:
        return "s%d" % base
    return "s[%d:%d]" % (base, base + n - 1)


def srd(a, dst, ptr, nbytes, add_lo=None):
    if add_lo is None:
        a("s_mov_b32 s%d, s%d" % (dst, ptr))
        a("s_mov_b32 s%d, s%d" % (dst + 1, ptr + 1))
    else:
        off = add_lo if isinstance(add_lo, str) else "0x%x" % add_lo
        a("s_add_u32 s%d, s%d, %s" % (dst, ptr, off))
        a("s_addc_u32 s%d, s%d, 0" % (dst + 1, ptr + 1))
    a("s_mov_b32 s%d, 0x%x" % (dst + 2, nbytes))
    a("s_mov_b32 s%d, 0x00020000" % (dst + 3))


def kd(name, vgpr, sgpr=102, accum=None):
    if accum is None:
        accum = (vgpr + 3) // 4 * 4
    return """.p2align 6
.amdhsa_kernel %s
  .amdhsa_next_free_vgpr %d
  .amdhsa_next_free_sgpr %d
  .amdhsa_accum_offset %d
  .amdhsa_group_segment_fixed_size 0
  .amdhsa_kernarg_size 112
  .amdhsa_user_sgpr_count 2
  .amdhsa_user_sgpr_kernarg_segment_ptr 1
  .amdhsa_system_sgpr_workgroup_id_x 1
.end_amdhsa_kernel
""" % (name, vgpr, sgpr, accum)
```

```python
import sys, os
sys.path.insert(0, os.path.dirname(__file__))
from asmlib import *

NAME = "concat_heads__grouped_kv_mqa__ssm_conv_h3__prompt_kernel"
OPT = dict(kv.split("=") for kv in os.environ.get("OPT", "").split(",") if kv)
def opt(k, d):
    return int(OPT.get(k, d))

WS_KV = 0
WS_KVT = 0x100000
WS_O = 0x300000
WS_Z = 0x500000
WS_C0 = 0x40000
WS_FB = 0x42000
WS_FS = 0x43000
WS_FA = 0x48000
WS_FC = 0x60000
FCS = opt("fcs", 7)
WS_BYTES = 0x700000
STAMP = int(os.environ.get("STAMP", "0"))
WS_ST = 0x800000
if STAMP:
    WS_BYTES = 0x1000000

P_X, P_WQ, P_WK, P_WV, P_WO, P_BQ, P_BK, P_BV, P_SH, P_SSMK, P_SSMD, P_OUT, P_DBG, P_WS = [8 + 2 * i for i in range(14)]

JW = 0
XS = 16384
WQ1 = 81920
SCR = 114688
WQ2 = 130048
CNT = 162816
WO = 16384
HB = 131072
HCH = 8448
XB = 147968
XCH = 6144
LX = 160256
OOR = 0x30000
C_F, C_MODE, C_J, C_T, C_QX, C_E, C_QF, C_WO, C_C, C_CV, C_CMB, C_RED, C_Q = 0, 10, 12, 13, 15, 16, 17, 21, 22, 23, 32, 40, 48
C_OS, C_KT, C_S = 26, 27, 28
FULL = 72


def stamp(a, i):
    if i == 2 and opt("clk", 1):
        return
    if opt("tail", 0) and 3 <= i <= 8:
        return
    if i >= 100:
        if not opt("tail", 0):
            return
        i -= 100
    if i == 99:
        if not opt("clk", 1):
            return
        i = 2
    if STAMP:
        a("s_memtime s[%d:%d]" % (76 + 2 * i, 77 + 2 * i))


def rstamp(a, i):
    if STAMP:
        a("s_memrealtime s[%d:%d]" % (76 + 2 * i, 77 + 2 * i))


def stamp_out(a, n, wavereg):
    if not STAMP:
        return
    a("s_waitcnt lgkmcnt(0)")
    for i in range(n):
        a("v_writelane_b32 v0, s%d, %d" % (76 + 2 * i, i))
    a("""
    s_lshl_b32 s6, s2, 4
    s_add_u32 s6, s6, %s
    s_lshl_b32 s6, s6, 6
    s_add_u32 s6, s6, 0x%x
    v_mbcnt_lo_u32_b32 v1, -1, 0
    v_mbcnt_hi_u32_b32 v1, -1, v1
    v_lshlrev_b32 v1, 2, v1
    s_mov_b64 exec, 0xffff
    buffer_store_dword v0, v1, s[48:51], s6 offen
    """ % (wavereg, WS_ST))


def setm0(a, val):
    a("s_mov_b32 m0, %s" % (val if isinstance(val, str) else "0x%x" % val))
    a("s_nop 0")


def ldma(a, voff, srdreg, soff, imm=0, sc1=False):
    a("buffer_load_dwordx4 %s, s[%d:%d], %s offen%s%s lds" % (voff, srdreg, srdreg + 3, soff, " offset:%d" % imm if imm else "", " sc1" if sc1 else ""))


VC, VONE = 3, 7


def ladd(a, idx, vreg=None, vaddr=None):
    a("ds_add_u32 v%d, v%d offset:%d" % (VC if vaddr is None else vaddr, VONE if vreg is None else vreg, 4 * idx))


def lwait(a, idx, val, vtmp=5, vaddr=None):
    L = a.newlabel("lw")
    a.label(L)
    a("""
    ds_read_b32 v%d, v%d offset:%d
    s_waitcnt lgkmcnt(0)
    v_readfirstlane_b32 s6, v%d
    s_cmp_lt_u32 s6, %d
    s_cbranch_scc1 %s
    """ % (vtmp, VC if vaddr is None else vaddr, 4 * idx, vtmp, val, L))


def gload(a, voff, soff, n, vt):
    a("buffer_load_dword%s %s, %s, s[48:51], %s offen sc1" % ("" if n == 1 else "x%d" % n, vr(vt, n), voff, soff))


def gpoll(a, voff, soff, n, vt, sleep=None, issued=False):
    L = a.newlabel("gp")
    W = a.newlabel("gpw")
    D = a.newlabel("gpd")
    if issued:
        a("s_branch %s" % W)
    a.label(L)
    gload(a, voff, soff, n, vt)
    a.label(W)
    a("s_waitcnt vmcnt(0)")
    a("v_cmp_ne_u32 vcc, s52, v%d" % vt)
    a("s_cbranch_vccz %s" % D)
    a("s_mov_b64 exec, vcc")
    sl = opt("gsleep", 2) if sleep is None else sleep
    if sl:
        a("s_sleep %d" % sl)
    a("""
    s_sub_u32 s53, s53, 1
    s_cbranch_scc0 %s
    s_mov_b32 s53, 0
    """ % L)
    a.label(D)
    a("s_mov_b64 exec, -1")


def flag_store(a, soff, vtmp):
    a("""
    v_mov_b32 v%d, s52
    s_mov_b64 exec, 1
    buffer_store_dword v%d, off, s[48:51], %s sc1
    s_mov_b64 exec, -1
    """ % (vtmp, vtmp, soff))


AD, IDX, VCA, VF, L16 = 1, 2, 4, 5, 6
QA, QB, K0, K1, V0, V1, W0, W1 = 8, 12, 16, 20, 24, 28, 32, 36
S = [48, 64]
OA, OB, NM = 96, 112, 128
EXP = lambda r: "v_exp_f32 v%d, v%d" % (r, r)


def QK(D, K, Q, C):
    return "v_mfma_f32_32x32x16_bf16 %s, %s, %s, %s" % (vr(D, 16), vr(K, 4), vr(Q, 4), vr(C, 16) if C is not None else "0")


def SM(O, V, B):
    return "v_smfmac_f32_32x32x32_bf16 %s, %s, %s, v%d" % (vr(O, 16), vr(V, 4), vr(B, 8), IDX)


def RD(D, A, off):
    return "ds_read_b128 %s, v%d offset:%d" % (vr(D, 4), A, off)


def gen_attn(a):
    srd(a, 36, P_X, 0x200000)
    srd(a, 40, P_WQ, 0x80000)
    a("""
    s_and_b32 s54, s3, 3
    s_lshr_b32 s55, s3, 2
    s_and_b32 s6, s54, 1
    s_lshl_b32 s56, s4, 1
    s_add_u32 s56, s56, s6
    s_lshl_b32 s56, s56, 5
    s_lshl_b32 s7, s5, 2
    s_add_u32 s56, s56, s7
    s_and_b32 s7, s54, 2
    s_add_u32 s56, s56, s7
    s_add_u32 s56, s56, s55
    s_lshl_b32 s56, s56, 10
    s_add_u32 s56, s56, 0x%x
    """ % WS_O)
    a("""
    v_lshrrev_b32 v12, 4, v0
    v_and_b32 v13, 15, v0
    @xsw
    s_lshl_b32 s6, s54, 2
    v_xor_b32 v13, s6, v13
    v_lshlrev_b32 v13, 4, v13
    v_lshl_add_u32 v12, v12, 10, v13
    v_lshrrev_b32 v13, 3, v0
    v_and_b32 v14, 7, v0
    v_lshrrev_b32 v15, 2, v0
    v_and_b32 v15, 4, v15
    v_xor_b32 v14, v14, v15
    v_lshlrev_b32 v14, 4, v14
    v_lshl_add_u32 v13, v13, 10, v14
    s_lshr_b32 s57, s5, 1
    s_lshl_b32 s58, s4, 16
    s_lshl_b32 s7, s54, 12
    s_add_u32 s58, s58, s7
    s_lshl_b32 s59, s55, 15
    s_lshl_b32 s7, s54, 10
    s_add_u32 s59, s59, s7
    s_add_u32 s59, s59, %d
    s_lshl_b32 s60, s54, 15
    s_lshl_b32 s7, s5, 7
    s_add_u32 s60, s60, s7
    s_lshl_b32 s61, s54, 12
    s_mul_i32 s7, s55, %d
    s_add_u32 s61, s61, s7
    s_add_u32 s61, s61, %d
    s_lshl_b32 s62, s55, 1
    s_add_u32 s62, s62, s75
    s_add_u32 s63, s62, 1
    s_and_b32 s62, s62, 3
    s_and_b32 s63, s63, 3
    """ % (XS, WQ2 - WQ1, WQ1))
    for i in range(3):
        a("""
        s_add_u32 s6, s57, %d
        s_and_b32 s6, s6, 3
        s_lshl_b32 s7, s6, 14
        s_add_u32 s%d, s58, s7
        s_lshl_b32 s7, s6, 12
        s_add_u32 s%d, s59, s7
        """ % (i + 1, 66 + i, 69 + i))
    a("""
    s_lshl_b32 s6, s55, 3
    v_add_u32 v14, s6, v%d
    @stamp 2
    s_barrier
    """ % VC)
    if opt("touch", 0):
        a("""
        s_cmp_eq_u32 s55, 0
        s_cbranch_scc1 L_notouch
        s_lshl_b32 s6, s4, 16
        s_load_dword s72, s[%d:%d], s6
        s_load_dword s72, s[%d:%d], s6
        s_load_dword s72, s[%d:%d], s6
        s_load_dword s72, s[%d:%d], s56
        s_lshl_b32 s6, s2, 13
        s_load_dword s72, s[%d:%d], s6
        s_add_u32 s7, s6, 0x%x
        s_load_dword s72, s[%d:%d], s7
        s_add_u32 s7, s6, 0x%x
        s_load_dword s72, s[%d:%d], s7
        s_load_dword s72, s[%d:%d], 0
        s_load_dword s72, s[%d:%d], 0
        """ % (P_BK, P_BK + 1, P_BV, P_BV + 1, P_BQ, P_BQ + 1, P_WS, P_WS + 1, P_SSMK, P_SSMK + 1, WS_KVT, P_WS, P_WS + 1, WS_Z, P_WS, P_WS + 1, P_WO, P_WO + 1, P_SH, P_SH + 1))
        a.label("L_notouch")
    pst = opt("pst", 0)
    if pst:
        a("s_cmp_eq_u32 s55, 0")
        a("s_cbranch_scc1 L_stg")
        if pst == 1:
            lwait(a, C_J, 4)
        elif pst == 2:
            lwait(a, C_J, 6)
        elif pst == 3:
            lwait(a, C_S, 5)
        a.label("L_stg")
    for j in range(2):
        a("""
        s_lshl_b32 s6, s%d, 17
        s_add_u32 s6, s6, s60
        s_add_u32 m0, s61, %d
        s_lshl_b32 s7, s%d, 8
        """ % (62 + j, 16384 * j, 62 + j))
        for i in range(4):
            ldma(a, "v13", 40, "s6", 1024 * i)
            if i < 3:
                a("s_add_u32 s6, s6, 7168")
        for i in range(3):
            a("s_add_u32 m0, s%d, %d" % (69 + i, 16384 * j))
            a("s_add_u32 s6, s%d, s7" % (66 + i))
            ldma(a, "v12", 36, "s6")
    a("@stamp 3")
    a("""
    s_mov_b32 s64, 0xffff
    s_mov_b32 s65, 0xffff
    v_mov_b32 v%d, 0xdddddddd
    v_mov_b32 v%d, v%d
    s_lshl_b32 s6, s55, 11
    v_add_u32 v%d, s6, v%d
    v_and_b32 v40, 27, v0
    v_mov_b32 v41, 0x3f803f80
    v_cmp_eq_u32 vcc, 16, v40
    s_nop 1
    v_cndmask_b32 v%d, 0, v41, vcc
    """ % (IDX, VCA, VC, AD, L16, V0))
    for i in range(1, 16):
        a("v_mov_b32 v%d, v%d" % (V0 + i, V0))
    a("s_waitcnt vmcnt(7)")
    ladd(a, C_S, vaddr=14)
    a("s_cmp_lg_u32 s55, 0")
    a("s_cbranch_scc1 L_pwave")
    XA, WA, FA, FB, ACC = 40, 12, 48, 80, 112
    a("""
    v_and_b32 v14, 31, v0
    v_lshrrev_b32 v15, 5, v0
    v_and_b32 v16, 15, v0
    v_xor_b32 v15, v15, v16
    v_lshlrev_b32 v15, 4, v15
    v_lshl_add_u32 v15, v14, 8, v15
    s_and_b32 s6, s54, 1
    s_lshl_b32 s6, s6, 13
    s_add_u32 s6, s6, %d
    v_add_u32 v%d, s6, v15
    """ % (XS, XA))
    for m in range(1, 8):
        a("v_xor_b32 v%d, %d, v%d" % (XA + m, 32 * m, XA))
    a("""
    v_lshrrev_b32 v14, 5, v0
    v_lshrrev_b32 v15, 2, v16
    v_lshl_add_u32 v14, v14, 3, v15
    v_lshlrev_b32 v14, 7, v14
    v_lshrrev_b32 v15, 3, v16
    s_lshr_b32 s6, s54, 1
    v_xor_b32 v15, s6, v15
    v_lshl_add_u32 v14, v15, 6, v14
    v_lshrrev_b32 v15, 4, v0
    v_and_b32 v15, 1, v15
    v_lshl_add_u32 v14, v15, 5, v14
    v_and_b32 v15, 3, v0
    v_lshl_add_u32 v14, v15, 3, v14
    v_add_u32 v%d, %d, v14
    v_add_u32 v%d, %d, v14
    """ % (WA, WQ1, WA + 1, WQ2))

    def grd(s):
        b = s % 8
        H, t = s >> 4, s & 15
        a("ds_read_b64_tr_b16 %s, v%d offset:%d" % (vr(FA + 4 * b, 2), WA + H, 2048 * t))
        a("ds_read_b64_tr_b16 %s, v%d offset:%d" % (vr(FA + 4 * b + 2, 2), WA + H, 2048 * t + 512))
        a("ds_read_b128 %s, v%d offset:%d" % (vr(FB + 4 * b, 4), XA + (s & 7), 16384 * (s >> 3)))
    for H in range(4):
        if H == 1:
            a("s_waitcnt vmcnt(0)")
            ladd(a, C_S + 1)
        lwait(a, C_S + H, 5)
        if H in (0, 3):
            a("@stamp %d" % (4 if H == 0 else 5))
        for s in range(8 * H, 8 * H + 4):
            grd(s)
        for s in range(8 * H, 8 * H + 8):
            if (s & 7) + 4 < 8:
                grd(s + 4)
                a("s_waitcnt lgkmcnt(12)")
            else:
                a("s_waitcnt lgkmcnt(%d)" % (3 * (7 - (s & 7))))
            if s in (7, 15, 31):
                ladd(a, C_Q + min(s >> 3, 2))
            b = s % 8
            a("v_mfma_f32_32x32x16_bf16 %s, %s, %s, %s" % (vr(ACC, 16), vr(FA + 4 * b, 4), vr(FB + 4 * b, 4), "0" if s == 0 else vr(ACC, 16)))
    a("""
    s_lshl_b32 s6, s54, 12
    s_add_u32 s6, s6, %d
    v_add_u32 v40, s6, v%d
    s_lshl_b32 s6, s54, 2
    v_add_u32 v41, s6, v%d
    s_mov_b32 s7, 0x3eb8aa3b
    s_nop 7
    """ % (SCR + 1024, L16, VC))
    for i in range(16):
        a("v_mul_f32 v%d, s7, v%d" % (ACC + i, ACC + i))
    for i in range(8):
        a("v_cvt_pk_bf16_f32 v%d, v%d, v%d" % (QA + i, ACC + 2 * i, ACC + 2 * i + 1))
    a("""
    ds_write_b128 v40, %s
    ds_write_b128 v40, %s offset:1024
    """ % (vr(QA, 4), vr(QB, 4)))
    ladd(a, C_QF, vaddr=41)
    a("@stamp 6")
    a("s_branch L_att")
    a.label("L_pwave")
    a("""
    @stamp 4
    s_lshl_b32 s58, s54, 12
    s_waitcnt vmcnt(0)
    """)
    ladd(a, C_S + 3)
    a("""
    @stamp 5
    s_add_u32 s6, s58, %d
    v_add_u32 v40, s6, v%d
    s_lshl_b32 s6, s54, 2
    v_add_u32 v41, s6, v%d
    """ % (SCR + 1024, L16, VC))
    lwait(a, C_QF, 1, vaddr=41)
    a("""
    ds_read_b128 %s, v40 offset:1024
    ds_read_b128 %s, v40
    """ % (vr(QA, 4), vr(QB, 4)))
    ladd(a, C_QX)
    a("@stamp 6")
    a.label("L_att")
    for i in range(16):
        a("v_mov_b32 v%d, 0" % (OA + i))
        a("v_mov_b32 v%d, 0" % (OB + i))
    lwait(a, C_E, 4)
    a("@stamp 7")
    a(RD(40, L16, 0))
    a(RD(K0, AD, 0))
    a("s_mov_b64 exec, s[64:65]")
    a(RD(V0, AD, 1024))
    a(RD(V1, AD, 1280))
    a("s_mov_b64 exec, -1")
    a(RD(K1, AD, 4096))
    a("s_waitcnt lgkmcnt(4)")
    a(QK(S[0], 40, QA, None))
    a(QK(S[1], 40, QB, None))
    a("s_mov_b32 s66, 0")
    a("s_setprio %d" % opt("aprio", 1))
    if opt("bal", 0) == 1:
        a("s_xor_b32 s67, s55, %d" % opt("bph", 1))
    if opt("bal", 0) == 2 or opt("bini", 0):
        a("s_cmp_eq_u32 s55, 0")
        a("s_cbranch_scc1 L_bal2")
        a("s_setprio %d" % (opt("aprio", 1) + 1))
        a.label("L_bal2")
    a("s_nop 7")
    a("s_nop 1")
    a("v_max3_f32 v44, v%d, v%d, v%d" % (S[0], S[0] + 1, S[0] + 2))
    for i in range(3, 31, 2):
        a("v_max3_f32 v44, v44, v%d, v%d" % (S[0] + i, S[0] + i + 1))
    a("v_max_f32 v44, v44, v%d" % (S[0] + 31))
    a("""
    v_mov_b32 v45, v44
    s_nop 1
    v_permlane32_swap_b32 v44, v45
    s_nop 1
    v_max_f32 v44, v44, v45
    """)
    for i in range(16):
        a("v_sub_f32 v%d, 0, v44" % (NM + i))
    a("s_waitcnt lgkmcnt(0)")
    for i in range(2):
        a("v_mov_b32 v%d, 0" % (S[1] + 8 + i))
    a(QK(S[0], K0, QA, NM))
    for i in range(2, 8):
        a("v_mov_b32 v%d, 0" % (S[1] + 8 + i))
    a("s_nop 5")
    a("@stamp 8")
    a("s_branch L_la")

    def tile(n):
        Vc = (V0, V1) if n % 2 == 0 else (W0, W1)
        Vo = (W0, W1) if n % 2 == 0 else (V0, V1)
        Kc = K0 if n % 2 == 0 else K1
        Kn = K1 if n % 2 == 0 else K0
        X, Y = S[0], S[1]
        L = [EXP(X), EXP(X + 1), SM(OB, Vo[1], Y + 8)]
        L += [EXP(X + i) for i in range(2, 7)]
        L.append(QK(Y, Kc, QB, NM))
        L += ["s_mov_b64 exec, s[64:65]", RD(Vo[0], AD, (n + 1) * 4096 + 1024), RD(Vo[1], AD, (n + 1) * 4096 + 1280), "s_mov_b64 exec, -1"]
        L.append(RD(Kc, AD, (n + 2) * 4096))
        if n == 1:
            L.append("ds_read_b32 v%d, v%d" % (VF, VCA))
        L += [EXP(X + i) for i in range(7, 12)]
        L.append("s_waitcnt lgkmcnt(%d)" % (4 if n == 1 else 3))
        L.append(SM(OA, Vc[0], X))
        L += [EXP(X + i) for i in range(12, 16)]
        X, Y = S[1], S[0]
        L += [EXP(X), EXP(X + 1), SM(OA, Vc[1], Y + 8)]
        L += [EXP(X + i) for i in range(2, 7)]
        L.append(QK(Y, Kn, QA, NM))
        L += [EXP(X + i) for i in range(7, 12)]
        L.append(SM(OB, Vc[0], X))
        if n == 1:
            L += ["s_waitcnt lgkmcnt(0)", "v_readfirstlane_b32 s6, v%d" % VF, "ds_add_u32 v%d, v%d offset:8" % (VCA, VONE)]
        L += [EXP(X + i) for i in range(12, 16)]
        for ln in L:
            a(ln)
    a.raw(".p2align 6")
    a.label("L_lc")
    tile(2)
    tile(3)
    a("s_cbranch_scc1 L_lexit")
    a("v_add_u32 v%d, 0x4000, v%d" % (AD, AD))
    a.label("L_la")
    tile(0)
    tile(1)
    a("s_cmp_lg_u32 s6, %d" % FULL)
    a("s_cbranch_scc1 L_lspin")
    a.label("L_lok")
    if opt("bal", 0) == 1:
        a("""
        s_setprio %d
        s_xor_b32 s67, s67, 1
        s_cbranch_scc0 L_lok2
        s_setprio %d
        """ % (opt("aprio", 1), opt("aprio", 1) + 1))
        a.label("L_lok2")
    a("""
    v_add_u32 v%d, 4, v%d
    s_add_u32 s66, s66, 0x20000000
    s_branch L_lc
    """ % (VCA, VCA))
    a.label("L_lspin")
    lwait(a, 0, FULL, VF, VCA)
    a("s_branch L_lok")
    a.label("L_lexit")
    a("@stamp 9")
    a("s_nop 1")
    a(SM(OB, W1, S[1] + 8))
    a("""
    s_lshl_b32 s57, s3, 11
    s_xor_b32 s58, s57, 0x2000
    v_add_u32 v40, s57, v%d
    v_add_u32 v41, s58, v%d
    v_lshlrev_b32 v42, 2, v0
    s_lshl_b32 s6, s3, 8
    v_add_u32 v42, s6, v42
    v_xor_b32 v43, 0x400, v42
    v_add_u32 v42, %d, v42
    v_add_u32 v43, %d, v43
    s_lshl_b32 s6, s3, 2
    v_add_u32 v44, s6, v%d
    v_xor_b32 v45, 16, v44
    s_mov_b32 s68, 0
    s_nop 7
    ds_write_b128 v40, %s
    ds_write_b128 v40, %s offset:1024
    ds_write_b32 v42, v%d
    """ % (L16, L16, LX, LX, VC, vr(OB, 4), vr(OB + 4, 4), OB + 8))
    ladd(a, C_CMB, vaddr=44)
    lwait(a, C_CMB, 1, vaddr=45)
    a("""
    ds_read_b32 v5, v%d offset:%d
    ds_read_b32 v%d, v43
    ds_read_b128 %s, v41
    ds_read_b128 %s, v41 offset:1024
    s_mov_b32 s69, 0x5d800000
    s_mov_b32 s70, 0x21800000
    v_mov_b32 v46, 0x207
    s_waitcnt lgkmcnt(2)
    v_readfirstlane_b32 s71, v5
    v_add_f32 v%d, v%d, v%d
    s_waitcnt lgkmcnt(0)
    """ % (VC, 4 * C_MODE, OB + 8, vr(OB, 4), vr(OB + 4, 4), OA + 8, OA + 8, OB + 8))
    for i in range(8):
        a("v_add_f32 v%d, v%d, v%d" % (OA + i, OA + i, OB + i))
    a.label("L_norm")
    a("""
    v_rcp_f32 v47, v%d
    v_cmp_ngt_f32 vcc, s69, v%d
    v_cmp_nlt_f32 s[6:7], s70, v%d
    s_or_b64 vcc, vcc, s[6:7]
    """ % (OA + 8, OA + 8, OA + 8))
    for i in range(8):
        a("v_cmp_class_f32 s[6:7], v%d, v46" % (OA + i))
        a("s_or_b64 vcc, vcc, s[6:7]")
    for i in range(8):
        a("v_mul_f32 v%d, v%d, v47" % (OB + i, OA + i))
    a("""
    s_cmp_lg_u32 s68, 0
    s_cbranch_scc1 L_ostore
    s_cbranch_vccnz L_slow
    """)
    a.label("L_ostore")
    for i in range(4):
        a("v_cvt_pk_bf16_f32 v%d, v%d, v%d" % (OB + 8 + i, OB + 2 * i, OB + 2 * i + 1))
    for i in range(4):
        a("v_min_u32 v%d, -2, v%d" % (OB + 8 + i, OB + 8 + i))
    a("""
    s_cmp_eq_u32 s71, 2
    s_cbranch_scc1 L_ost1
    """)
    lwait(a, C_MODE, 1)
    a("""
    buffer_store_dwordx4 %s, v%d, s[48:51], s56 offen sc1
    s_branch L_ost2
    """ % (vr(OB + 8, 4), L16))
    a.label("L_ost1")
    a("buffer_store_dwordx4 %s, v%d, s[48:51], s56 offen" % (vr(OB + 8, 4), L16))
    a.label("L_ost2")
    ladd(a, C_OS)
    a("@stamp 10")
    BF, AC, WF = 8, 40, 56
    a("""
    v_lshrrev_b32 v1, 4, v0
    v_and_b32 v2, 15, v0
    v_lshlrev_b32 v4, 4, v2
    v_lshl_add_u32 v4, v1, 9, v4
    s_lshl_b32 s60, s4, 1
    s_lshr_b32 s6, s54, 1
    s_add_u32 s60, s60, s6
    s_lshl_b32 s60, s60, 15
    s_lshl_b32 s6, s55, 14
    s_add_u32 s60, s60, s6
    s_and_b32 s6, s54, 1
    s_lshl_b32 s6, s6, 8
    s_add_u32 s60, s60, s6
    s_add_u32 s60, s60, 0x%x
    s_add_u32 s61, s60, 0x1000
    s_add_u32 s62, s60, 0x2000
    s_add_u32 s63, s60, 0x3000
    """ % WS_O)

    def oload(s):
        a("buffer_load_dwordx4 %s, v4, s[48:51], s%d offen%s sc1" % (vr(BF + 4 * s, 4), 60 + (s >> 1), " offset:2048" if s & 1 else ""))
    srd(a, 44, P_OUT, 0x400000)
    a("""
    v_mov_b32 v164, v40
    v_mov_b32 v165, v41
    v_mov_b32 v166, v44
    v_mov_b32 v167, v45
    v_and_b32 v40, 1, v1
    v_lshrrev_b32 v41, 1, v1
    v_lshrrev_b32 v42, 2, v2
    v_lshl_add_u32 v42, v40, 2, v42
    v_lshrrev_b32 v43, 1, v42
    v_lshl_add_u32 v42, v41, 4, v42
    v_lshlrev_b32 v42, 7, v42
    v_and_b32 v44, 3, v0
    v_lshl_add_u32 v42, v44, 3, v42
    s_lshl_b32 s6, s55, 1
    v_xor_b32 v43, s6, v43
    v_lshl_add_u32 v42, v43, 5, v42
    s_lshl_b32 s6, s55, 15
    s_add_u32 s6, s6, %d
    v_add_u32 v160, s6, v42
    v_xor_b32 v161, 32, v160
    v_xor_b32 v162, 64, v160
    v_xor_b32 v163, 96, v160
    v_lshlrev_b32 v2, 11, v2
    v_lshl_add_u32 v2, v40, 5, v2
    v_lshl_add_u32 v2, v41, 4, v2
    s_lshl_b32 s57, s4, 17
    s_lshl_b32 s6, s54, 15
    s_add_u32 s57, s57, s6
    s_lshl_b32 s6, s5, 7
    s_add_u32 s57, s57, s6
    s_lshl_b32 s6, s55, 6
    s_add_u32 s57, s57, s6
    """ % WO)
    a("@stamp 103")
    lwait(a, C_WO, 2)
    a("@stamp 104")
    NPRE = 6

    def wrd(s):
        b = s % NPRE
        for c in range(4):
            a("ds_read_b64_tr_b16 %s, v%d offset:%d" % (vr(WF + 16 * b + 4 * c, 2), 160 + c, 4096 * s))
            a("ds_read_b64_tr_b16 %s, v%d offset:%d" % (vr(WF + 16 * b + 4 * c + 2, 2), 160 + c, 4096 * s + 1024))
    for s in range(NPRE):
        wrd(s)
    lwait(a, C_OS, 8)
    a("@stamp 105")
    for s in range(8):
        oload(s)
    if STAMP and opt("tail", 0):
        a("s_waitcnt vmcnt(0)")
        a("@stamp 106")
    retry = []
    for s in range(8):
        Lc = "L_oc%d" % s
        a.label(Lc)
        a("""
        s_waitcnt vmcnt(%d)
        v_max3_u32 v5, v%d, v%d, v%d
        v_max_u32 v5, v5, v%d
        v_cmp_eq_u32 vcc, -1, v5
        s_cbranch_vccnz L_or%d
        """ % (7 - s, BF + 4 * s, BF + 4 * s + 1, BF + 4 * s + 2, BF + 4 * s + 3, s))
        a.label("L_og%d" % s)
        if s == 0 or s >= NPRE:
            a("s_waitcnt lgkmcnt(%d)" % (0 if s != NPRE else 8))
        b = s % NPRE
        for c in range(4):
            a("v_mfma_f32_16x16x32_bf16 %s, %s, %s, %s" % (vr(AC + 4 * c, 4), vr(WF + 16 * b + 4 * c, 4), vr(BF + 4 * s, 4), "0" if s == 0 else vr(AC + 4 * c, 4)))
        if s + NPRE < 8:
            wrd(s + NPRE)
        retry.append(s)
    a("@stamp 11")
    if STAMP and opt("tail", 0):
        a("s_sub_u32 s90, 20000, s53")
        a("s_add_u32 s90, s90, s78")
    a("""
    s_nop 6
    ds_write_b128 v165, %s
    ds_write_b128 v165, %s offset:1024
    """ % (vr(AC + 8, 4), vr(AC + 12, 4)))
    ladd(a, C_RED, vaddr=166)
    lwait(a, C_RED, 1, vaddr=167)
    a("""
    ds_read_b128 %s, v164
    ds_read_b128 %s, v164 offset:1024
    s_waitcnt lgkmcnt(0)
    """ % (vr(AC + 8, 4), vr(AC + 12, 4)))
    for i in range(8):
        a("v_add_f32 v%d, v%d, v%d" % (AC + i, AC + i, AC + 8 + i))
    for i in range(4):
        a("v_cvt_pk_bf16_f32 v%d, v%d, v%d" % (8 + i, AC + 2 * i, AC + 2 * i + 1))
    a("""
    s_nop 1
    v_permlane16_swap_b32 v8, v10
    v_permlane16_swap_b32 v9, v11
    s_nop 1
    @stamp 108
    buffer_store_dwordx4 v[8:11], v2, s[44:47], s57 offen
    """)
    if STAMP:
        a("s_waitcnt vmcnt(0)")
    a("""
    @stamp 99
    @rstamp 12
    @stampout 13 s3
    s_endpgm
    """)
    for s in retry:
        a.label("L_or%d" % s)
        a("""
        s_mov_b32 s67, %d
        s_sub_u32 s53, s53, 1
        s_cbranch_scc0 L_oq
        s_mov_b32 s53, 0
        s_branch L_og%d
        """ % (s, s))
    a.label("L_oq")
    a("s_waitcnt vmcnt(0)")
    for t in range(8):
        a("""
        v_max3_u32 v5, v%d, v%d, v%d
        v_max_u32 v5, v5, v%d
        v_cmp_eq_u32 vcc, -1, v5
        s_cbranch_vccz L_oq%d
        """ % (BF + 4 * t, BF + 4 * t + 1, BF + 4 * t + 2, BF + 4 * t + 3, t))
        oload(t)
        a.label("L_oq%d" % t)
    a("s_waitcnt vmcnt(0)")
    for t in range(7):
        a("s_cmp_eq_u32 s67, %d" % t)
        a("s_cbranch_scc1 L_oc%d" % t)
    a("s_branch L_oc7")
    a.label("L_slow")
    a("""
    s_mov_b32 s68, 1
    v_mov_b32 v47, 0xff800000
    s_mov_b32 s66, 0
    """)
    a.label("L_slow1")
    a("""
    buffer_load_dwordx4 %s, v%d, s[48:51], s66 offen sc1
    s_waitcnt vmcnt(0)
    %s
    s_add_u32 s66, s66, 0x800
    s_nop 7
    s_nop 3
    """ % (vr(K0, 4), L16, QK(S[0], K0, QA, None)))
    for i in range(0, 16, 2):
        a("v_max3_f32 v47, v47, v%d, v%d" % (S[0] + i, S[0] + i + 1))
    a("""
    s_cmp_lt_u32 s66, 0x20000
    s_cbranch_scc1 L_slow1
    v_mov_b32 v5, v47
    s_nop 1
    v_permlane32_swap_b32 v47, v5
    s_nop 1
    v_max_f32 v47, v47, v5
    s_mov_b32 s66, 0
    """)
    for i in range(16):
        a("v_sub_f32 v%d, 0, v47" % (NM + i))
        a("v_mov_b32 v%d, 0" % (OA + i))
    a.label("L_slow2")
    a("""
    buffer_load_dwordx4 %s, v%d, s[48:51], s66 offen sc1
    s_mov_b64 exec, s[64:65]
    buffer_load_dwordx4 %s, v%d, s[48:51], s66 offen offset:1024 sc1
    buffer_load_dwordx4 %s, v%d, s[48:51], s66 offen offset:1280 sc1
    s_mov_b64 exec, -1
    s_waitcnt vmcnt(0)
    %s
    s_add_u32 s66, s66, 0x800
    s_nop 7
    s_nop 3
    """ % (vr(K0, 4), L16, vr(V0, 4), L16, vr(V1, 4), L16, QK(S[0], K0, QA, NM)))
    for i in range(16):
        a(EXP(S[0] + i))
    a("""
    s_nop 2
    %s
    %s
    s_nop 7
    s_nop 7
    s_cmp_lt_u32 s66, 0x20000
    s_cbranch_scc1 L_slow2
    s_nop 7
    s_branch L_norm
    """ % (SM(OA, V0, S[0]), SM(OA, V1, S[0] + 8)))


def gen_aux(a):
    a.label("L_aux")
    a("s_setprio 3")
    srd(a, 36, P_X, 0x200000)
    a("""
    s_sub_u32 s54, s3, 8
    s_lshr_b32 s55, s5, 1
    s_and_b32 s56, s5, 1
    s_cmp_eq_u32 s56, 0
    s_cselect_b32 s40, s%d, s%d
    s_cselect_b32 s41, s%d, s%d
    s_mov_b32 s42, 16384
    s_mov_b32 s43, 0x00020000
    s_lshl_b32 s57, s4, 16
    s_lshl_b32 s6, s55, 14
    s_add_u32 s57, s57, s6
    s_lshl_b32 s6, s54, 8
    s_add_u32 s57, s57, s6
    s_sub_u32 s74, s54, s75
    s_and_b32 s74, s74, 3
    s_lshl_b32 s58, s74, 14
    s_lshl_b32 s6, s55, 12
    s_add_u32 s58, s58, s6
    s_add_u32 s58, s58, %d
    s_mov_b32 m0, s58
    s_lshl_b32 s59, s54, 12
    """ % (P_WK, P_WV, P_WK + 1, P_WV + 1, XS))
    for p in range(4):
        ldma(a, "v%d" % (8 + p), 36, "s57", 1024 * p)
    setm0(a, "s59")
    for t in range(4):
        ldma(a, "v%d" % L16, 40, "s59", 1024 * t)
    a("@stamp 2")
    a("s_barrier")
    srd(a, 36, P_BK, 0x200000)
    srd(a, 40, P_BV, 0x200000)
    srd(a, 44, P_SH, 4096)
    KI, SH = 64, 104
    a("""
    v_lshrrev_b32 v8, 3, v0
    v_and_b32 v9, 7, v0
    s_lshl_b32 s60, s4, 6
    s_lshl_b32 s7, s54, 4
    s_add_u32 s60, s60, s7
    s_lshl_b32 s6, s60, 10
    s_lshl_b32 s7, s5, 7
    s_add_u32 s6, s6, s7
    v_lshlrev_b32 v10, 10, v8
    v_lshl_add_u32 v10, v9, 4, v10
    v_add_u32 v10, s6, v10
    v_subrev_u32 v11, 0x400, v10
    v_subrev_u32 v12, 0x800, v10
    v_subrev_u32 v13, 0xc00, v10
    v_add_u32 v14, 0x1400, v10
    s_lshl_b32 s61, s5, 9
    v_lshlrev_b32 v15, 6, v9
    """)
    def kvloads():
        a("""
    buffer_load_dwordx4 %s, v10, s[36:39], 0 offen
    buffer_load_dwordx4 %s, v11, s[36:39], 0 offen
    buffer_load_dwordx4 %s, v12, s[36:39], 0 offen
    buffer_load_dwordx4 %s, v13, s[36:39], 0 offen
    buffer_load_dwordx4 %s, v10, s[40:43], 0 offen
    buffer_load_dwordx4 %s, v14, s[36:39], 0 offen offset:3072
    buffer_load_dwordx4 %s, v14, s[36:39], 0 offen offset:2048
    buffer_load_dwordx4 %s, v14, s[36:39], 0 offen offset:1024
    buffer_load_dwordx4 %s, v14, s[36:39], 0 offen
    buffer_load_dwordx4 %s, v14, s[40:43], 0 offen offset:3072
    buffer_load_dwordx4 %s, v15, s[44:47], s61 offen
    buffer_load_dwordx4 %s, v15, s[44:47], s61 offen offset:16
    buffer_load_dwordx4 %s, v15, s[44:47], s61 offen offset:32
    buffer_load_dwordx4 %s, v15, s[44:47], s61 offen offset:48
    """ % tuple([vr(KI + 4 * i, 4) for i in range(10)] + [vr(SH + 4 * i, 4) for i in range(4)]))
    a("""
    v_and_b32 v16, 15, v0
    v_lshrrev_b32 v17, 4, v0
    v_xor_b32 v18, v16, v17
    v_lshlrev_b32 v18, 4, v18
    v_lshl_add_u32 v18, v16, 8, v18
    v_add_u32 v18, s58, v18
    v_xor_b32 v19, 64, v18
    v_xor_b32 v20, 0x80, v18
    v_xor_b32 v21, 0xc0, v18
    v_lshlrev_b32 v22, 8, v17
    v_lshl_add_u32 v22, v16, 3, v22
    v_add_u32 v22, s59, v22
    v_add_u32 v23, s59, v%d
    s_lshl_b32 s6, s74, 2
    v_add_u32 v29, s6, v%d
    """ % (L16, VC))
    a("""
    v_lshrrev_b32 v24, s56, v17
    v_and_b32 v24, 1, v24
    s_xor_b32 s6, s56, 1
    v_lshrrev_b32 v25, s6, v17
    v_and_b32 v25, 1, v25
    v_lshlrev_b32 v24, 9, v24
    v_lshl_add_u32 v24, v25, 3, v24
    v_lshl_add_u32 v24, v16, 4, v24
    s_lshl_b32 s62, s4, 12
    s_lshr_b32 s6, s55, 1
    s_lshl_b32 s6, s6, 11
    s_add_u32 s62, s62, s6
    s_lshl_b32 s6, s56, 10
    s_add_u32 s62, s62, s6
    s_and_b32 s6, s55, 1
    s_lshl_b32 s6, s6, 8
    s_add_u32 s62, s62, s6
    s_and_b32 s63, s4, 3
    s_lshl_b32 s63, s63, 6
    s_lshr_b32 s6, s4, 2
    s_lshl_b32 s6, s6, 3
    s_add_u32 s63, s63, s6
    s_add_u32 s63, s63, s5
    s_lshl_b32 s63, s63, 7
    s_add_u32 s63, s63, 0x%x
    """ % WS_FA)
    a("""
    s_lshl_b32 s7, s54, 11
    s_add_u32 s7, s7, %d
    v_sub_u32 v26, 7, v8
    v_lshlrev_b32 v26, 7, v26
    v_lshl_add_u32 v26, v9, 4, v26
    v_add_u32 v26, s7, v26
    v_lshrrev_b32 v27, 2, v16
    v_lshlrev_b32 v27, 7, v27
    v_lshl_add_u32 v27, v17, 11, v27
    v_and_b32 v28, 2, v0
    v_lshl_add_u32 v27, v28, 9, v27
    v_and_b32 v28, 1, v0
    v_lshl_add_u32 v27, v28, 3, v27
    s_lshl_b32 s7, s54, 5
    s_add_u32 s7, s7, %d
    v_add_u32 v27, s7, v27
    v_lshlrev_b32 v28, 12, v9
    v_lshl_add_u32 v28, v8, 4, v28
    s_lshl_b32 s64, s5, 18
    s_lshl_b32 s6, s54, 16
    s_add_u32 s64, s64, s6
    s_lshl_b32 s6, s4, 7
    s_add_u32 s64, s64, s6
    s_add_u32 s64, s64, 0x%x
    s_lshl_b32 s65, s5, 9
    s_lshl_b32 s6, s54, 7
    s_add_u32 s65, s65, s6
    s_lshl_b32 s6, s4, 2
    s_add_u32 s65, s65, s6
    s_add_u32 s65, s65, 0x%x
    s_mov_b32 s66, 0x05040100
    s_mov_b32 s67, 0x07060302
    s_waitcnt vmcnt(0) lgkmcnt(0)
    s_add_u32 s52, s52, 1
    @stamp 3
    """ % (XB, XB, WS_KVT, WS_FB))
    XF, WF, ACC = 32, 48, 120
    for t in range(4):
        a("ds_read_b128 %s, v%d" % (vr(XF + 4 * t, 4), 18 + t))
        a("ds_read_b64_tr_b16 %s, v22 offset:%d" % (vr(WF + 4 * t, 2), 1024 * t))
        a("ds_read_b64_tr_b16 %s, v22 offset:%d" % (vr(WF + 4 * t + 2, 2), 1024 * t + 128))
    ladd(a, C_S, vaddr=29)
    a("s_cmp_eq_u32 s56, 0")
    a("s_cbranch_scc0 L_jobv")
    for kind in (0, 1):
        if kind:
            a.label("L_jobv")
        for t in range(4):
            a("s_waitcnt lgkmcnt(%d)" % (3 * (3 - t) + 1))
            A, B = (WF, XF) if kind == 0 else (XF, WF)
            a("v_mfma_f32_16x16x32_bf16 %s, %s, %s, %s" % (vr(ACC, 4), vr(A + 4 * t, 4), vr(B + 4 * t, 4), "0" if t == 0 else vr(ACC, 4)))
        if not kind:
            a("s_branch L_jobd")
    a.label("L_jobd")
    a("""
    s_nop 7
    ds_write_b128 v23, %s
    ds_add_rtn_u32 v5, v%d, v%d offset:%d
    s_waitcnt lgkmcnt(0)
    v_readfirstlane_b32 s68, v5
    s_cmp_lg_u32 s68, 3
    s_cbranch_scc1 L_notlast
    """ % (vr(ACC, 4), VC, VONE, 4 * C_J))
    for k in range(4):
        a("ds_read_b128 %s, v%d offset:%d" % (vr(XF + 4 * k, 4), L16, JW + 4096 * k))
    ladd(a, C_J)
    a("s_waitcnt lgkmcnt(1)")
    for i in range(4):
        a("v_add_f32 v%d, v%d, v%d" % (XF + i, XF + i, XF + 4 + i))
        a("v_add_f32 v%d, v%d, v%d" % (XF + 8 + i, XF + 8 + i, XF + 12 + i))
    for i in range(4):
        a("v_add_f32 v%d, v%d, v%d" % (XF + i, XF + i, XF + 8 + i))
    a("""
    v_cvt_pk_bf16_f32 v30, v%d, v%d
    v_cvt_pk_bf16_f32 v31, v%d, v%d
    buffer_store_dwordx2 v[30:31], v24, s[48:51], s62 offen sc1
    """ % (XF, XF + 1, XF + 2, XF + 3))
    ladd(a, C_J)
    a("s_waitcnt vmcnt(0)")
    flag_store(a, "s63", 5)
    a.label("L_notlast")
    a("@stamp 4")
    a("""
    s_lshl_b32 s57, s54, 13
    s_add_u32 s57, s57, 0x%x
    v_lshlrev_b32 v8, 7, v0
    v_mov_b32 v29, 16
    s_mov_b32 m0, s59
    s_and_b32 s6, s54, 1
    s_lshl_b32 s56, s4, 1
    s_add_u32 s56, s56, s6
    s_lshl_b32 s56, s56, 5
    s_lshl_b32 s7, s5, 2
    s_add_u32 s56, s56, s7
    s_and_b32 s7, s54, 2
    s_add_u32 s56, s56, s7
    s_lshl_b32 s56, s56, 10
    s_add_u32 s56, s56, 0x%x
    v_mov_b32 v144, -1
    v_mov_b32 v145, -1
    v_mov_b32 v146, -1
    v_mov_b32 v147, -1
    """ % (WS_FA, WS_O))
    lwait(a, C_J, 5)
    a("s_mov_b64 exec, 0xff")
    gpoll(a, "v8", "s57", 1, 9)
    for i in range(4):
        ldma(a, "v%d" % L16, 48, "s59", 1024 * i, sc1=True)
    a("@stamp 5")
    a("s_mov_b64 exec, 0xffffff")
    gload(a, "v8", "s57", 1, 9)
    a("s_waitcnt vmcnt(1)")
    ladd(a, C_E)
    gpoll(a, "v8", "s57", 1, 9, issued=True)
    lwait(a, C_S + 3, 5)
    a("@stamp 6")

    def convsetup():
        a("""
        s_lshr_b32 s62, s54, 1
        s_and_b32 s63, s54, 1
        s_lshl_b32 s6, s2, 1
        s_add_u32 s69, s6, s62
        s_lshl_b32 s7, s69, 12
        """)
        srd(a, 36, P_SSMK, 4096, "s7")
        a("""
        s_load_dword s70, s[36:37], 0
        s_lshl_b32 s61, s2, 2
        s_load_dword s71, s[%d:%d], s61
        s_add_u32 s72, s7, 0x%x
        s_add_u32 s73, s7, 0x%x
        s_mul_i32 s74, s62, %d
        s_add_u32 s74, s74, %d
        s_mul_i32 s75, s62, %d
        s_add_u32 s75, s75, %d
        """ % (P_SSMD, P_SSMD + 1, WS_KVT, WS_Z, HCH, HB, XCH, XB))

    def kvt():
        T0, T1, T2 = 32, 48, 56
        for u in range(2):
            k = KI + 20 * u
            for d in range(4):
                a("v_perm_b32 v%d, v%d, v%d, s66" % (T0 + 4 * d, k + 4 + d, k + d))
                a("v_perm_b32 v%d, v%d, v%d, s66" % (T0 + 1 + 4 * d, k + 12 + d, k + 8 + d))
                a("v_perm_b32 v%d, v%d, v%d, s67" % (T0 + 2 + 4 * d, k + 4 + d, k + d))
                a("v_perm_b32 v%d, v%d, v%d, s67" % (T0 + 3 + 4 * d, k + 12 + d, k + 8 + d))
            for c in range(8):
                d, hi = c >> 1, c & 1
                a("v_dot2_f32_bf16 v%d, v%d, v%d, 0" % (T1 + c, T0 + 4 * d + 2 * hi, SH + 2 * c))
            for c in range(8):
                d, hi = c >> 1, c & 1
                a("v_dot2_f32_bf16 v%d, v%d, v%d, v%d" % (T1 + c, T0 + 1 + 4 * d + 2 * hi, SH + 1 + 2 * c, T1 + c))
            for d in range(4):
                a("v_lshlrev_b32 v%d, 16, v%d" % (T2 + 2 * d, k + 16 + d))
                a("v_and_b32 v%d, 0xffff0000, v%d" % (T2 + 1 + 2 * d, k + 16 + d))
            for c in range(8):
                a("v_mul_f32 v%d, v%d, v%d" % (T1 + c, T1 + c, T2 + c))
            for d in range(4):
                a("v_cvt_pk_bf16_f32 v%d, v%d, v%d" % (k + d, T1 + 2 * d, T1 + 2 * d + 1))
            a("ds_write_b128 v26, %s offset:%d" % (vr(k, 4), 1024 * u))
        ladd(a, C_KT)
        lwait(a, C_KT, 4)
        for e in range(2):
            a("ds_read_b64_tr_b16 %s, v27 offset:%d" % (vr(KI + 4 * e, 2), 16 * e))
            a("ds_read_b64_tr_b16 %s, v27 offset:%d" % (vr(KI + 4 * e + 2, 2), 16 * e + 512))
        ladd(a, C_KT)
        a("""
        s_add_u32 s6, s64, 0x8000
        s_waitcnt lgkmcnt(1)
        buffer_store_dwordx4 %s, v28, s[48:51], s64 offen sc1
        buffer_store_dwordx4 %s, v28, s[48:51], s6 offen sc1
        buffer_store_dwordx4 v[144:147], v%d, s[48:51], s56 offen sc1
        buffer_store_dwordx4 v[144:147], v%d, s[48:51], s56 offen offset:1024 sc1
        @stamp 7
        """ % (vr(KI, 4), vr(KI + 4, 4), L16, L16))

    def kvgroup(g):
        if g <= 3:
            lwait(a, C_Q + g - 1, 4)
        if g == 7:
            lwait(a, C_QX, 4)
        a("s_add_u32 s59, s59, 0x4000")
        setm0(a, "s59")
        for i in range(4):
            ldma(a, "v%d" % L16, 48, "s59", 1024 * i, sc1=True)

    def hcopy():
        a("""
        s_mul_i32 s60, s63, 4164
        s_add_u32 s60, s60, s74
        s_add_u32 m0, s60, 64
        s_lshl_b32 s61, s63, 1
        """)
        for i in range(4):
            ldma(a, "v%d" % L16, 36, "s61", 1024 * i)
    sched = [1, "l", 2, "p", ("w", 1), ("w", 2), "P", 3, "t", 4, 5, ("w", 3), ("W", "t"), "fb", 6, ("w", 4), 7, ("w", 5), "h", ("w", 6), ("w", 7)]
    issued = []
    for it in sched:
        if isinstance(it, tuple):
            n = sum(c for (nm, c) in issued[[nm for (nm, c) in issued].index(it[1]) + 1:])
            a("s_waitcnt vmcnt(%d)" % n)
            if it[0] == "w":
                ladd(a, C_F + it[1] - 1, vreg=29)
        elif it == "l":
            kvloads()
            convsetup()
            issued.append((it, 14))
        elif it == "p":
            gload(a, "v8", "s57", 1, 9)
            issued.append((it, 1))
        elif it == "P":
            gpoll(a, "v8", "s57", 1, 9, issued=True)
        elif it == "t":
            kvt()
            issued.append((it, 4))
        elif it == "fb":
            flag_store(a, "s65", 5)
            ladd(a, C_T)
            issued.append((it, 1))
        elif it == "h":
            hcopy()
            issued.append((it, 4))
        else:
            kvgroup(it)
            issued.append((it, 4))
    a("""
    s_cmp_lg_u32 s54, 0
    s_cbranch_scc1 L_nofs
    s_lshl_b32 s57, s4, 7
    s_lshl_b32 s6, s5, 3
    s_add_u32 s57, s57, s6
    s_add_u32 s57, s57, 0x%x
    s_getreg_b32 s68, hwreg(HW_REG_XCC_ID, 0, 4)
    v_mov_b32 v8, s52
    v_mov_b32 v9, s68
    """ % WS_FS)
    lwait(a, C_T, 4)
    a("""
    s_mov_b64 exec, 1
    buffer_store_dwordx2 v[8:9], off, s[48:51], s57 sc1
    s_mov_b64 exec, -1
    """)
    a.label("L_nofs")
    a("@stamp 8")
    a("""
    v_lshlrev_b32 v8, 2, v0
    s_lshl_b32 s57, s5, 9
    s_lshr_b32 s6, s4, 3
    s_lshl_b32 s6, s6, 7
    s_add_u32 s57, s57, s6
    s_add_u32 s57, s57, 0x%x
    """ % WS_FB)
    lwait(a, C_KT, 8)
    a("s_mov_b32 exec_hi, 0")
    gpoll(a, "v8", "s57", 1, 10)
    a("""
    v_lshlrev_b32 v2, 6, v0
    s_mul_i32 s60, s63, 3072
    s_add_u32 s60, s60, s75
    s_add_u32 m0, s60, 512
    s_lshl_b32 s61, s63, 5
    s_add_u32 s61, s61, s72
    """)
    ldma(a, "v2", 48, "s61", sc1=True)
    a("s_add_u32 m0, s60, 2048")
    a("s_add_u32 s61, s61, 16")
    ldma(a, "v2", 48, "s61", sc1=True)
    N, G = 12, 13
    a("""
    v_mov_b32 v8, 0
    v_mov_b32 v9, 0
    v_mov_b32 v10, 0
    v_mov_b32 v11, 0
    v_and_b32 v12, 31, v0
    v_lshrrev_b32 v13, 5, v0
    v_mul_u32_u24 v14, 1536, v13
    v_lshl_add_u32 v14, v12, 4, v14
    v_add_u32 v14, s60, v14
    ds_write_b128 v14, v[8:11]
    s_mul_i32 s60, s63, 4160
    s_add_u32 s60, s60, s74
    v_lshlrev_b32 v14, 2, v0
    v_add_u32 v14, s60, v14
    s_waitcnt lgkmcnt(0)
    s_lshl_b32 s70, s70, 16
    v_mov_b32 v15, s70
    v_cmp_eq_u32 vcc, 16, v0
    s_add_u32 s61, s63, 16
    s_nop 1
    v_cndmask_b32 v15, 0, v15, vcc
    v_cmp_gt_u32 vcc, s61, v0
    s_nop 1
    s_mov_b64 exec, vcc
    ds_write_b32 v14, v15
    s_mov_b64 exec, -1
    """)
    a("""
    v_lshrrev_b32 v14, 2, v12
    v_and_b32 v14, 1, v14
    v_lshlrev_b32 v14, 4, v14
    v_lshrrev_b32 v15, 4, v12
    v_lshl_add_u32 v14, v15, 3, v14
    v_lshrrev_b32 v15, 3, v12
    v_and_b32 v15, 1, v15
    v_lshlrev_b32 v15, 2, v15
    v_sub_u32 v14, v14, v15
    v_and_b32 v15, 3, v12
    v_sub_u32 v14, v14, v15
    v_lshlrev_b32 v15, 3, v13
    v_sub_u32 v14, v14, v15
    v_subrev_u32 v14, 16, v14
    v_and_b32 v15, 1, v14
    v_mul_u32_u24 v15, 4162, v15
    v_lshl_add_u32 v14, v14, 1, v15
    v_add_u32 v14, 64, v14
    v_add_u32 v14, s74, v14
    v_mul_u32_u24 v15, 1536, v13
    v_lshl_add_u32 v15, v12, 4, v15
    s_lshl_b32 s60, s63, 9
    s_add_u32 s60, s60, s75
    s_add_u32 s60, s60, %d
    v_add_u32 v15, s60, v15
    s_lshl_b32 s66, 4, s63
    s_lshl_b32 s6, s62, 2
    v_add_u32 v4, s6, v%d
    s_waitcnt vmcnt(0)
    """ % ((32 - 9) * 16, VC))
    ladd(a, C_CV, vaddr=4)
    ACC, TF, XF = 16, 32, 64
    for i in range(16):
        a("v_mov_b32 v%d, 0" % (ACC + i))
    lwait(a, C_CV, 2, vaddr=4)
    a("@stamp 9")
    a("s_setprio %d" % opt("cprio", 0))

    def crd(mm):
        b = mm % 4
        for kk in range(2):
            o = 8 * (2 * mm - kk + 1)
            a("ds_read2_b32 %s, v14 offset0:%d offset1:%d" % (vr(TF + 8 * b + 4 * kk, 2), o, o + 1))
            a("ds_read2_b32 %s, v14 offset0:%d offset1:%d" % (vr(TF + 8 * b + 4 * kk + 2, 2), o + 2, o + 3))
            a("ds_read_b128 %s, v15 offset:%d" % (vr(XF + 8 * b + 4 * kk, 4), kk * 3072 + (9 - mm) * 16))
    crd(0)
    crd(1)
    a.label("L_conv")
    for mm in range(8):
        a("s_waitcnt lgkmcnt(6)")
        b = mm % 4
        for kk in range(2):
            a("v_mfma_f32_32x32x16_bf16 %s, %s, %s, %s" % (vr(ACC, 16), vr(TF + 8 * b + 4 * kk, 4), vr(XF + 8 * b + 4 * kk, 4), vr(ACC, 16)))
        crd(mm + 2)
    a("""
    v_add_u32 v14, 0x200, v14
    v_subrev_u32 v15, 0x80, v15
    s_sub_u32 s66, s66, 1
    s_cmp_lg_u32 s66, 0
    s_cbranch_scc1 L_conv
    @stamp 10
    s_setprio 3
    """)
    a("""
    v_mul_u32_u24 v15, 3072, v13
    v_lshl_add_u32 v15, v12, 4, v15
    s_lshl_b32 s60, s63, 9
    s_add_u32 s60, s60, s75
    s_add_u32 s60, s60, 512
    v_add_u32 v15, s60, v15
    s_waitcnt lgkmcnt(0)
    ds_read_b128 v[32:35], v15
    ds_read_b128 v[36:39], v15 offset:1536
    s_lshl_b32 s60, s62, 4
    s_lshr_b32 s71, s71, s60
    s_lshl_b32 s71, s71, 16
    v_lshlrev_b32 v14, 5, v12
    v_lshl_add_u32 v14, v13, 4, v14
    s_lshl_b32 s60, s63, 11
    s_add_u32 s73, s73, s60
    s_lshl_b32 s60, s63, 9
    s_add_u32 s60, s60, s69
    s_lshl_b32 s60, s60, %d
    s_add_u32 s60, s60, 0x%x
    s_waitcnt lgkmcnt(0)
    """ % (FCS, WS_FC))
    ladd(a, C_C)
    for d in range(8):
        a("v_lshlrev_b32 v%d, 16, v%d" % (40 + 2 * d, 32 + d))
        a("v_and_b32 v%d, 0xffff0000, v%d" % (41 + 2 * d, 32 + d))
    for i in range(16):
        a("v_fmac_f32 v%d, s71, v%d" % (ACC + i, 40 + i))
    for d in range(8):
        a("v_cvt_pk_bf16_f32 v%d, v%d, v%d" % (32 + d, ACC + 2 * d, ACC + 2 * d + 1))
    a("""
    buffer_store_dwordx4 v[32:35], v14, s[48:51], s73 offen sc1
    buffer_store_dwordx4 v[36:39], v14, s[48:51], s73 offen offset:1024 sc1
    """)
    srd(a, 40, P_BQ, 0x200000)
    srd(a, 44, P_OUT, 0x400000)
    a("""
    v_lshrrev_b32 v2, 1, v0
    v_lshlrev_b32 v2, 12, v2
    v_and_b32 v8, 1, v0
    v_lshl_add_u32 v2, v8, 10, v2
    s_lshl_b32 s57, s5, 18
    s_lshr_b32 s7, s4, 4
    s_lshl_b32 s7, s7, 11
    s_add_u32 s57, s57, s7
    s_and_b32 s7, s4, 15
    s_lshl_b32 s7, s7, 6
    s_add_u32 s57, s57, s7
    s_lshl_b32 s7, s54, 4
    s_add_u32 s57, s57, s7
    s_add_u32 s57, s57, 0x%x
    s_lshl_b32 s58, s54, 11
    s_add_u32 s58, s58, %d
    v_and_b32 v8, 15, v0
    v_xor_b32 v9, 7, v8
    v_lshrrev_b32 v10, 4, v0
    v_lshlrev_b32 v11, 10, v9
    v_lshl_add_u32 v11, v10, 4, v11
    v_lshlrev_b32 v12, 11, v9
    v_lshl_add_u32 v12, v10, 4, v12
    s_lshl_b32 s6, s4, 6
    s_lshl_b32 s7, s54, 4
    s_add_u32 s6, s6, s7
    s_lshl_b32 s64, s6, 10
    s_lshl_b32 s7, s5, 7
    s_add_u32 s64, s64, s7
    s_lshl_b32 s65, s6, 11
    s_add_u32 s65, s65, s7
    s_add_u32 s65, s65, 0x400
    v_lshlrev_b32 v13, 3, v8
    v_lshl_add_u32 v13, v10, 8, v13
    v_add_u32 v13, s58, v13
    s_waitcnt vmcnt(0)
    """ % (WS_Z, HB))
    a("@stamp 103")
    flag_store(a, "s60", 5)
    a("""
    buffer_load_dwordx4 v[16:19], v11, s[40:43], s64 offen
    buffer_load_dwordx4 v[20:23], v11, s[40:43], s64 offen offset:64
    s_setprio 0
    s_cmp_lg_u32 s63, 0
    s_cbranch_scc1 L_nowo
    """)
    a("""
    s_cmp_lg_u32 s54, 0
    s_cbranch_scc1 L_nosp
    v_lshlrev_b32 v8, 3, v0
    s_lshl_b32 s60, s4, 7
    s_add_u32 s60, s60, 0x%x
    s_mov_b64 exec, 0xff
    """ % WS_FS)
    gpoll(a, "v8", "s60", 2, 14)
    a("""
    s_mov_b64 exec, 0xff
    v_cmp_ne_u32 vcc, s68, v15
    s_mov_b64 exec, -1
    s_cmp_eq_u64 vcc, 0
    s_cselect_b32 s6, %d, 1
    v_mov_b32 v8, s6
    """ % (2 if opt("ofast", 1) else 1))
    ladd(a, C_MODE, vreg=8)
    a.label("L_nosp")
    srd(a, 36, P_WO, 0x80000)
    a("""
    v_lshrrev_b32 v8, 3, v0
    v_lshrrev_b32 v9, 1, v0
    v_and_b32 v9, 3, v9
    v_xor_b32 v9, v9, v10
    v_and_b32 v14, 1, v0
    v_lshlrev_b32 v8, 10, v8
    v_lshl_add_u32 v8, v14, 4, v8
    v_lshl_add_u32 v8, v9, 5, v8
    s_lshl_b32 s60, s62, 18
    s_lshl_b32 s7, s5, 7
    s_add_u32 s60, s60, s7
    s_lshl_b32 s61, s62, 15
    s_add_u32 s61, s61, %d
    """ % WO)
    lwait(a, C_F + 7, FULL)
    a("@stamp 104")
    for j in range(8):
        a("s_add_u32 m0, s61, %d" % (4096 * j))
        a("s_nop 0")
        for i in range(4):
            ldma(a, "v8", 36, "s60", 1024 * i)
            a("s_add_u32 s60, s60, %d" % (7168 if i < 3 else 7168 + 4096))
    a("s_waitcnt vmcnt(0)")
    ladd(a, C_WO)
    a("@stamp 105")
    a.label("L_nowo")
    a("""
    v_lshlrev_b32 v8, %d, v0
    s_lshr_b32 s60, s4, 4
    s_lshl_b32 s60, s60, 3
    s_add_u32 s60, s60, s5
    s_lshl_b32 s60, s60, %d
    s_add_u32 s60, s60, 0x%x
    """ % (FCS, FCS + 6, WS_FC))
    lwait(a, C_C, 4)
    a("""
    s_or_b32 s6, s2, s54
    s_cmp_lg_u32 s6, 0
    s_cbranch_scc1 L_noc0
    s_mov_b32 s6, 0x%x
    """ % WS_C0)
    flag_store(a, "s6", 5)
    a.label("L_noc0")
    a("@stamp 106")
    gpoll(a, "v8", "s60", 1, 9)
    a("@stamp 11")
    setm0(a, "s58")
    ldma(a, "v2", 48, "s57", sc1=True)
    a("s_add_u32 s57, s57, 0x%x" % (0x20000 - 1024))
    ldma(a, "v2", 48, "s57", 1024, sc1=True)
    a("s_setprio 3")
    for d in range(8):
        a("v_lshlrev_b32 v%d, 16, v%d" % (24 + 2 * d, 16 + d))
        a("v_and_b32 v%d, 0xffff0000, v%d" % (25 + 2 * d, 16 + d))
    a("""
    s_waitcnt vmcnt(0)
    @stamp 107
    ds_read_b64_tr_b16 v[16:17], v13
    ds_read_b64_tr_b16 v[18:19], v13 offset:128
    ds_read_b64_tr_b16 v[20:21], v13 offset:1024
    ds_read_b64_tr_b16 v[22:23], v13 offset:1152
    s_waitcnt lgkmcnt(0)
    """)
    for d in range(8):
        a("v_lshlrev_b32 v%d, 16, v%d" % (40 + 2 * d, 16 + d))
        a("v_and_b32 v%d, 0xffff0000, v%d" % (41 + 2 * d, 16 + d))
    for i in range(16):
        a("v_mul_f32 v%d, v%d, v%d" % (24 + i, 24 + i, 40 + i))
    for d in range(8):
        a("v_cvt_pk_bf16_f32 v%d, v%d, v%d" % (16 + d, 24 + 2 * d, 25 + 2 * d))
    a("""
    @stamp 108
    buffer_store_dwordx4 v[16:19], v12, s[44:47], s65 offen
    buffer_store_dwordx4 v[20:23], v12, s[44:47], s65 offen offset:64
    """)
    if STAMP:
        a("s_waitcnt vmcnt(0)")
    a("""
    @stamp 99
    @rstamp 12
    @stampout 13 s3
    """)


def gen(a):
    a.label(NAME)
    a("""
    s_cmp_ge_u32 s2, 256
    s_cbranch_scc1 L_end
    @rstamp 0
    @stamp 1
    s_load_dwordx4 s[32:35], s[0:1], 96
    s_load_dwordx16 s[8:23], s[0:1], 0
    s_load_dwordx8 s[24:31], s[0:1], 64
    v_lshrrev_b32 v1, 6, v0
    v_and_b32 v0, 63, v0
    @map
    s_and_b32 s4, s2, 31
    v_readfirstlane_b32 s3, v1
    s_lshr_b32 s5, s2, 5
    s_lshr_b32 s75, s4, 3
    s_mul_i32 s75, s75, %d
    v_lshlrev_b32 v%d, 4, v0
    v_mov_b32 v%d, 1
    v_mov_b32 v8, 0x%x
    v_mov_b32 v9, 0x%x
    v_cmp_eq_u32 vcc, 0, v0
    s_mov_b32 s53, 20000
    s_cmp_lg_u32 s3, 0
    v_cndmask_b32 v%d, v8, v9, vcc
    s_cbranch_scc1 L_nocnt
    v_cmp_gt_u32 vcc, 2, v0
    v_lshl_add_u32 v9, v0, 2, v9
    s_nop 0
    v_cndmask_b32 v8, 0, 8, vcc
    v_cmp_eq_u32 vcc, 7, v0
    s_nop 1
    v_cndmask_b32 v8, v8, 64, vcc
    ds_write_b32 v9, v8
    """ % (opt("qrot", 1), L16, VONE, OOR, CNT, VC))
    a.label("L_nocnt")
    a("""
    v_lshrrev_b32 v12, 4, v0
    v_and_b32 v13, 15, v0
    @xsw
    v_lshlrev_b32 v13, 4, v13
    v_lshl_add_u32 v8, v12, 10, v13
    v_xor_b32 v9, 64, v8
    v_xor_b32 v10, 0x80, v8
    v_xor_b32 v11, 0xc0, v8
    v_add_u32 v9, 3072, v9
    v_add_u32 v10, 6144, v10
    v_add_u32 v11, 9216, v11
    s_waitcnt lgkmcnt(0)
    s_load_dword s52, s[%d:%d], 0x%x
    """ % (P_WS, P_WS + 1, WS_C0))
    srd(a, 48, P_WS, WS_BYTES)
    a("s_cmp_ge_u32 s3, 8")
    a("s_cbranch_scc1 L_aux")
    gen_attn(a)
    gen_aux(a)
    a.label("L_end")
    a("s_endpgm")


def main(path):
    a = Asm()
    a.hooks["xsw"] = lambda a: a("v_xor_b32 v13, v13, v12" if opt("xsw", 1) else "s_nop 0")
    a.hooks["map"] = lambda a: a("""
    s_and_b32 s4, s2, 7
    s_lshr_b32 s5, s2, 6
    s_lshl_b32 s5, s5, 3
    s_or_b32 s4, s4, s5
    s_and_b32 s2, s2, 0x38
    s_lshl_b32 s2, s2, 2
    s_or_b32 s2, s2, s4
    """ if opt("map", 1) else "")
    a.hooks["stamp"] = lambda a, i: stamp(a, int(i))
    a.hooks["rstamp"] = lambda a, i: rstamp(a, int(i))
    a.hooks["stampout"] = lambda a, n, w: stamp_out(a, int(n), w)
    hdr = """; concat(MQA attention, H3 ssm-conv) - generated by gen/gen2.py
; @launch grid=(256,1,1) block=(768,1,1) lds=163840
.amdgcn_target "amdgcn-amd-amdhsa--gfx950"
.text
"""
    a.raw(".globl %s\n.p2align 8\n.type %s,@function" % (NAME, NAME))
    gen(a)
    out = hdr + a.text() + '.section .rodata,"a"\n' + kd(NAME, 168)
    open(path, "w").write(out)


if __name__ == "__main__":
    main(sys.argv[1] if len(sys.argv) > 1 else "g2.s")
```

```python
import sys, os
sys.path.insert(0, os.path.dirname(__file__))
from asmlib import *

NAME = "concat_heads__grouped_kv_mqa__ssm_conv_h3__prompt_kernel"
OPT = dict(kv.split("=") for kv in os.environ.get("OPT", "").split(",") if kv)
def opt(k, d):
    return int(OPT.get(k, d))

WS_KV = 0
WS_KVT = 0x100000
WS_O = 0x300000
WS_Z = 0x500000
WS_C0 = 0x40000
WS_FB = 0x42000
WS_FS = 0x43000
WS_FA = 0x48000
WS_FC = 0x60000
FCS = opt("fcs", 7)
WS_BYTES = 0x700000
STAMP = int(os.environ.get("STAMP", "0"))
WS_ST = 0x800000
if STAMP:
    WS_BYTES = 0x1000000

P_X, P_WQ, P_WK, P_WV, P_WO, P_BQ, P_BK, P_BV, P_SH, P_SSMK, P_SSMD, P_OUT, P_DBG, P_WS = [8 + 2 * i for i in range(14)]

JW = 0
XS = 16384
WQ1 = 81920
SCR = 114688
WQ2 = 130048
CNT = 162816
WO = 16384
HB = 131072
HCH = 8448
XB = 147968
XCH = 6144
LX = 160256
OOR = 0x30000
C_F, C_MODE, C_J, C_T, C_QX, C_E, C_QF, C_WO, C_C, C_CV, C_CMB, C_RED, C_Q = 0, 10, 12, 13, 15, 16, 17, 21, 22, 23, 32, 40, 48
C_OS, C_KT, C_S = 26, 27, 28
FULL = 72


def stamp(a, i):
    if i == 2 and opt("clk", 1):
        return
    if opt("tail", 0) and 3 <= i <= 8:
        return
    if i >= 100:
        if not opt("tail", 0):
            return
        i -= 100
    if i == 99:
        if not opt("clk", 1):
            return
        i = 2
    if STAMP:
        a("s_memtime s[%d:%d]" % (76 + 2 * i, 77 + 2 * i))


def rstamp(a, i):
    if STAMP:
        a("s_memrealtime s[%d:%d]" % (76 + 2 * i, 77 + 2 * i))


def stamp_out(a, n, wavereg):
    if not STAMP:
        return
    if STAMP == 2:
        a("s_waitcnt lgkmcnt(0)")
        srd(a, 44, P_DBG, 256)
        a("s_not_b32 s76, s76")
        for i in range(2, 12):
            a("s_sub_u32 s%d, s%d, s78" % (76 + 2 * i, 76 + 2 * i))
            a("s_lshr_b32 s%d, s%d, 4" % (76 + 2 * i, 76 + 2 * i))
        sel = os.environ.get("DSEL", "G")
        a("v_mov_b32 v0, s76")
        a("v_mov_b32 v1, s100")
        a("s_mov_b64 exec, 1")
        a("buffer_atomic_umax v0, off, s[44:47], 0 offset:4")
        a("buffer_atomic_umax v1, off, s[44:47], 0")
        lo, hi = {"G": (0, 4), "P": (4, 8), "A": (8, 12)}[sel]
        L = a.newlabel("nodbg")
        a("s_cmp_lt_u32 %s, %d" % (wavereg, lo))
        a("s_cbranch_scc1 %s" % L)
        a("s_cmp_ge_u32 %s, %d" % (wavereg, hi))
        a("s_cbranch_scc1 %s" % L)
        for i in range(2, 12):
            a("v_mov_b32 v0, s%d" % (76 + 2 * i))
            a("buffer_atomic_add v0, off, s[44:47], 0 offset:%d" % (4 * i))
            a("s_nop 0")
        a.label(L)
        return
    a("s_waitcnt lgkmcnt(0)")
    for i in range(n):
        a("v_writelane_b32 v0, s%d, %d" % (76 + 2 * i, i))
    a("""
    s_lshl_b32 s6, s2, 4
    s_add_u32 s6, s6, %s
    s_lshl_b32 s6, s6, 6
    s_add_u32 s6, s6, 0x%x
    v_mbcnt_lo_u32_b32 v1, -1, 0
    v_mbcnt_hi_u32_b32 v1, -1, v1
    v_lshlrev_b32 v1, 2, v1
    s_mov_b64 exec, 0xffff
    buffer_store_dword v0, v1, s[48:51], s6 offen
    """ % (wavereg, WS_ST))


def setm0(a, val):
    a("s_mov_b32 m0, %s" % (val if isinstance(val, str) else "0x%x" % val))
    a("s_nop 0")


def ldma(a, voff, srdreg, soff, imm=0, sc1=False):
    a("buffer_load_dwordx4 %s, s[%d:%d], %s offen%s%s lds" % (voff, srdreg, srdreg + 3, soff, " offset:%d" % imm if imm else "", " sc1" if sc1 else ""))


VC, VONE = 3, 7


def ladd(a, idx, vreg=None, vaddr=None):
    a("ds_add_u32 v%d, v%d offset:%d" % (VC if vaddr is None else vaddr, VONE if vreg is None else vreg, 4 * idx))


def lwait(a, idx, val, vtmp=5, vaddr=None):
    L = a.newlabel("lw")
    a.label(L)
    a("""
    ds_read_b32 v%d, v%d offset:%d
    s_waitcnt lgkmcnt(0)
    v_readfirstlane_b32 s6, v%d
    s_cmp_lt_u32 s6, %d
    s_cbranch_scc1 %s
    """ % (vtmp, VC if vaddr is None else vaddr, 4 * idx, vtmp, val, L))


def gload(a, voff, soff, n, vt):
    a("buffer_load_dword%s %s, %s, s[48:51], %s offen sc1" % ("" if n == 1 else "x%d" % n, vr(vt, n), voff, soff))


def gpoll(a, voff, soff, n, vt, sleep=None, issued=False):
    L = a.newlabel("gp")
    W = a.newlabel("gpw")
    D = a.newlabel("gpd")
    if issued:
        a("s_branch %s" % W)
    a.label(L)
    gload(a, voff, soff, n, vt)
    a.label(W)
    a("s_waitcnt vmcnt(0)")
    a("v_cmp_ne_u32 vcc, s52, v%d" % vt)
    a("s_cbranch_vccz %s" % D)
    a("s_mov_b64 exec, vcc")
    sl = opt("gsleep", 2) if sleep is None else sleep
    if sl:
        a("s_sleep %d" % sl)
    a("""
    s_sub_u32 s53, s53, 1
    s_cbranch_scc0 %s
    s_mov_b32 s53, 0
    """ % L)
    a.label(D)
    a("s_mov_b64 exec, -1")


def flag_store(a, soff, vtmp):
    a("""
    v_mov_b32 v%d, s52
    s_mov_b64 exec, 1
    buffer_store_dword v%d, off, s[48:51], %s sc1
    s_mov_b64 exec, -1
    """ % (vtmp, vtmp, soff))


AD, IDX, VCA, VF, L16 = 1, 2, 4, 5, 6
QA, QB, K0, K1, V0, V1, W0, W1 = 8, 12, 16, 20, 24, 28, 32, 36
S = [48, 64]
OA, OB, NM = 96, 112, 128
EXP = lambda r: "v_exp_f32 v%d, v%d" % (r, r)


def QK(D, K, Q, C):
    return "v_mfma_f32_32x32x16_bf16 %s, %s, %s, %s" % (vr(D, 16), vr(K, 4), vr(Q, 4), vr(C, 16) if C is not None else "0")


def SM(O, V, B):
    return "v_smfmac_f32_32x32x32_bf16 %s, %s, %s, v%d" % (vr(O, 16), vr(V, 4), vr(B, 8), IDX)


def RD(D, A, off):
    return "ds_read_b128 %s, v%d offset:%d" % (vr(D, 4), A, off)


def gen_attn(a):
    srd(a, 36, P_X, 0x200000)
    srd(a, 40, P_WQ, 0x80000)
    a("""
    s_and_b32 s54, s3, 3
    s_lshr_b32 s55, s3, 2
    s_and_b32 s6, s54, 1
    s_lshl_b32 s56, s4, 1
    s_add_u32 s56, s56, s6
    s_lshl_b32 s56, s56, 5
    s_lshl_b32 s7, s5, 2
    s_add_u32 s56, s56, s7
    s_and_b32 s7, s54, 2
    s_add_u32 s56, s56, s7
    s_add_u32 s56, s56, s55
    s_lshl_b32 s56, s56, 10
    s_add_u32 s56, s56, 0x%x
    """ % WS_O)
    a("""
    v_lshrrev_b32 v12, 4, v0
    v_and_b32 v13, 15, v0
    @xsw
    s_lshl_b32 s6, s54, 2
    v_xor_b32 v13, s6, v13
    v_lshlrev_b32 v13, 4, v13
    v_lshl_add_u32 v12, v12, 10, v13
    v_lshrrev_b32 v13, 3, v0
    v_and_b32 v14, 7, v0
    v_lshrrev_b32 v15, 2, v0
    v_and_b32 v15, 4, v15
    v_xor_b32 v14, v14, v15
    v_lshlrev_b32 v14, 4, v14
    v_lshl_add_u32 v13, v13, 10, v14
    s_lshr_b32 s57, s5, 1
    s_lshl_b32 s58, s4, 16
    s_lshl_b32 s7, s54, 12
    s_add_u32 s58, s58, s7
    s_lshl_b32 s59, s55, 15
    s_lshl_b32 s7, s54, 10
    s_add_u32 s59, s59, s7
    s_add_u32 s59, s59, %d
    s_lshl_b32 s60, s54, 15
    s_lshl_b32 s7, s5, 7
    s_add_u32 s60, s60, s7
    s_lshl_b32 s61, s54, 12
    s_mul_i32 s7, s55, %d
    s_add_u32 s61, s61, s7
    s_add_u32 s61, s61, %d
    s_lshl_b32 s62, s55, 1
    s_add_u32 s62, s62, s75
    s_add_u32 s63, s62, 1
    s_and_b32 s62, s62, 3
    s_and_b32 s63, s63, 3
    """ % (XS, WQ2 - WQ1, WQ1))
    for i in range(3):
        a("""
        s_add_u32 s6, s57, %d
        s_and_b32 s6, s6, 3
        s_lshl_b32 s7, s6, 14
        s_add_u32 s%d, s58, s7
        s_lshl_b32 s7, s6, 12
        s_add_u32 s%d, s59, s7
        """ % (i + 1, 66 + i, 69 + i))
    a("""
    s_lshl_b32 s6, s55, 3
    v_add_u32 v14, s6, v%d
    @stamp 2
    s_barrier
    """ % VC)
    if opt("touch", 0):
        a("""
        s_cmp_eq_u32 s55, 0
        s_cbranch_scc1 L_notouch
        s_lshl_b32 s6, s4, 16
        s_load_dword s72, s[%d:%d], s6
        s_load_dword s72, s[%d:%d], s6
        s_load_dword s72, s[%d:%d], s6
        s_load_dword s72, s[%d:%d], s56
        s_lshl_b32 s6, s2, 13
        s_load_dword s72, s[%d:%d], s6
        s_add_u32 s7, s6, 0x%x
        s_load_dword s72, s[%d:%d], s7
        s_add_u32 s7, s6, 0x%x
        s_load_dword s72, s[%d:%d], s7
        s_load_dword s72, s[%d:%d], 0
        s_load_dword s72, s[%d:%d], 0
        """ % (P_BK, P_BK + 1, P_BV, P_BV + 1, P_BQ, P_BQ + 1, P_WS, P_WS + 1, P_SSMK, P_SSMK + 1, WS_KVT, P_WS, P_WS + 1, WS_Z, P_WS, P_WS + 1, P_WO, P_WO + 1, P_SH, P_SH + 1))
        a.label("L_notouch")
    pst = opt("pst", 0)
    if pst:
        a("s_cmp_eq_u32 s55, 0")
        a("s_cbranch_scc1 L_stg")
        if pst == 1:
            lwait(a, C_J, 4)
        elif pst == 2:
            lwait(a, C_J, 6)
        elif pst == 3:
            lwait(a, C_S, 5)
        a.label("L_stg")
    for j in range(2):
        a("""
        s_lshl_b32 s6, s%d, 17
        s_add_u32 s6, s6, s60
        s_add_u32 m0, s61, %d
        s_lshl_b32 s7, s%d, 8
        """ % (62 + j, 16384 * j, 62 + j))
        for i in range(4):
            ldma(a, "v13", 40, "s6", 1024 * i)
            if i < 3:
                a("s_add_u32 s6, s6, 7168")
        for i in range(3):
            a("s_add_u32 m0, s%d, %d" % (69 + i, 16384 * j))
            a("s_add_u32 s6, s%d, s7" % (66 + i))
            ldma(a, "v12", 36, "s6")
    a("@stamp 3")
    a("""
    s_mov_b32 s64, 0xffff
    s_mov_b32 s65, 0xffff
    v_mov_b32 v%d, 0xdddddddd
    v_mov_b32 v%d, v%d
    s_lshl_b32 s6, s55, 11
    v_add_u32 v%d, s6, v%d
    v_and_b32 v40, 27, v0
    v_mov_b32 v41, 0x3f803f80
    v_cmp_eq_u32 vcc, 16, v40
    s_nop 1
    v_cndmask_b32 v%d, 0, v41, vcc
    """ % (IDX, VCA, VC, AD, L16, V0))
    for i in range(1, 16):
        a("v_mov_b32 v%d, v%d" % (V0 + i, V0))
    a("s_waitcnt vmcnt(7)")
    ladd(a, C_S, vaddr=14)
    a("s_cmp_lg_u32 s55, 0")
    a("s_cbranch_scc1 L_pwave")
    XA, WA, FA, FB, ACC = 40, 12, 48, 80, 112
    a("""
    v_and_b32 v14, 31, v0
    v_lshrrev_b32 v15, 5, v0
    v_and_b32 v16, 15, v0
    v_xor_b32 v15, v15, v16
    v_lshlrev_b32 v15, 4, v15
    v_lshl_add_u32 v15, v14, 8, v15
    s_and_b32 s6, s54, 1
    s_lshl_b32 s6, s6, 13
    s_add_u32 s6, s6, %d
    v_add_u32 v%d, s6, v15
    """ % (XS, XA))
    for m in range(1, 8):
        a("v_xor_b32 v%d, %d, v%d" % (XA + m, 32 * m, XA))
    a("""
    v_lshrrev_b32 v14, 5, v0
    v_lshrrev_b32 v15, 2, v16
    v_lshl_add_u32 v14, v14, 3, v15
    v_lshlrev_b32 v14, 7, v14
    v_lshrrev_b32 v15, 3, v16
    s_lshr_b32 s6, s54, 1
    v_xor_b32 v15, s6, v15
    v_lshl_add_u32 v14, v15, 6, v14
    v_lshrrev_b32 v15, 4, v0
    v_and_b32 v15, 1, v15
    v_lshl_add_u32 v14, v15, 5, v14
    v_and_b32 v15, 3, v0
    v_lshl_add_u32 v14, v15, 3, v14
    v_add_u32 v%d, %d, v14
    v_add_u32 v%d, %d, v14
    """ % (WA, WQ1, WA + 1, WQ2))

    def grd(s):
        b = s % 8
        H, t = s >> 4, s & 15
        a("ds_read_b64_tr_b16 %s, v%d offset:%d" % (vr(FA + 4 * b, 2), WA + H, 2048 * t))
        a("ds_read_b64_tr_b16 %s, v%d offset:%d" % (vr(FA + 4 * b + 2, 2), WA + H, 2048 * t + 512))
        a("ds_read_b128 %s, v%d offset:%d" % (vr(FB + 4 * b, 4), XA + (s & 7), 16384 * (s >> 3)))
    for H in range(4):
        if H == 1:
            a("s_waitcnt vmcnt(0)")
            ladd(a, C_S + 1)
        lwait(a, C_S + H, 5)
        if H in (0, 3):
            a("@stamp %d" % (4 if H == 0 else 5))
        for s in range(8 * H, 8 * H + 4):
            grd(s)
        for s in range(8 * H, 8 * H + 8):
            if (s & 7) + 4 < 8:
                grd(s + 4)
                a("s_waitcnt lgkmcnt(12)")
            else:
                a("s_waitcnt lgkmcnt(%d)" % (3 * (7 - (s & 7))))
            if s in (7, 15, 31):
                ladd(a, C_Q + min(s >> 3, 2))
            b = s % 8
            a("v_mfma_f32_32x32x16_bf16 %s, %s, %s, %s" % (vr(ACC, 16), vr(FA + 4 * b, 4), vr(FB + 4 * b, 4), "0" if s == 0 else vr(ACC, 16)))
    a("""
    s_lshl_b32 s6, s54, 12
    s_add_u32 s6, s6, %d
    v_add_u32 v40, s6, v%d
    s_lshl_b32 s6, s54, 2
    v_add_u32 v41, s6, v%d
    s_mov_b32 s7, 0x3eb8aa3b
    s_nop 7
    """ % (SCR + 1024, L16, VC))
    for i in range(16):
        a("v_mul_f32 v%d, s7, v%d" % (ACC + i, ACC + i))
    for i in range(8):
        a("v_cvt_pk_bf16_f32 v%d, v%d, v%d" % (QA + i, ACC + 2 * i, ACC + 2 * i + 1))
    a("""
    ds_write_b128 v40, %s
    ds_write_b128 v40, %s offset:1024
    """ % (vr(QA, 4), vr(QB, 4)))
    ladd(a, C_QF, vaddr=41)
    a("@stamp 6")
    a("s_branch L_att")
    a.label("L_pwave")
    a("""
    @stamp 4
    s_lshl_b32 s58, s54, 12
    s_waitcnt vmcnt(0)
    """)
    ladd(a, C_S + 3)
    a("""
    @stamp 5
    s_add_u32 s6, s58, %d
    v_add_u32 v40, s6, v%d
    s_lshl_b32 s6, s54, 2
    v_add_u32 v41, s6, v%d
    """ % (SCR + 1024, L16, VC))
    lwait(a, C_QF, 1, vaddr=41)
    a("""
    ds_read_b128 %s, v40 offset:1024
    ds_read_b128 %s, v40
    """ % (vr(QA, 4), vr(QB, 4)))
    ladd(a, C_QX)
    a("@stamp 6")
    a.label("L_att")
    for i in range(16):
        a("v_mov_b32 v%d, 0" % (OA + i))
        a("v_mov_b32 v%d, 0" % (OB + i))
    lwait(a, C_E, 4)
    a("@stamp 7")
    a(RD(40, L16, 0))
    a(RD(K0, AD, 0))
    a("s_mov_b64 exec, s[64:65]")
    a(RD(V0, AD, 1024))
    a(RD(V1, AD, 1280))
    a("s_mov_b64 exec, -1")
    a(RD(K1, AD, 4096))
    a("s_waitcnt lgkmcnt(4)")
    a(QK(S[0], 40, QA, None))
    a(QK(S[1], 40, QB, None))
    a("s_mov_b32 s66, 0")
    a("s_setprio %d" % opt("aprio", 1))
    if opt("bal", 0) == 1:
        a("s_xor_b32 s67, s55, %d" % opt("bph", 1))
    if opt("bal", 0) == 2 or opt("bini", 0):
        a("s_cmp_eq_u32 s55, 0")
        a("s_cbranch_scc1 L_bal2")
        a("s_setprio %d" % (opt("aprio", 1) + 1))
        a.label("L_bal2")
    a("s_nop 7")
    a("s_nop 1")
    a("v_max3_f32 v44, v%d, v%d, v%d" % (S[0], S[0] + 1, S[0] + 2))
    for i in range(3, 31, 2):
        a("v_max3_f32 v44, v44, v%d, v%d" % (S[0] + i, S[0] + i + 1))
    a("v_max_f32 v44, v44, v%d" % (S[0] + 31))
    a("""
    v_mov_b32 v45, v44
    s_nop 1
    v_permlane32_swap_b32 v44, v45
    s_nop 1
    v_max_f32 v44, v44, v45
    """)
    for i in range(16):
        a("v_sub_f32 v%d, 0, v44" % (NM + i))
    a("s_waitcnt lgkmcnt(0)")
    for i in range(2):
        a("v_mov_b32 v%d, 0" % (S[1] + 8 + i))
    a(QK(S[0], K0, QA, NM))
    for i in range(2, 8):
        a("v_mov_b32 v%d, 0" % (S[1] + 8 + i))
    a("s_nop 5")
    a("@stamp 8")
    a("s_branch L_la")

    def tile(n):
        Vc = (V0, V1) if n % 2 == 0 else (W0, W1)
        Vo = (W0, W1) if n % 2 == 0 else (V0, V1)
        Kc = K0 if n % 2 == 0 else K1
        Kn = K1 if n % 2 == 0 else K0
        X, Y = S[0], S[1]
        L = [EXP(X), EXP(X + 1), SM(OB, Vo[1], Y + 8)]
        L += [EXP(X + i) for i in range(2, 7)]
        L.append(QK(Y, Kc, QB, NM))
        L += ["s_mov_b64 exec, s[64:65]", RD(Vo[0], AD, (n + 1) * 4096 + 1024), RD(Vo[1], AD, (n + 1) * 4096 + 1280), "s_mov_b64 exec, -1"]
        L.append(RD(Kc, AD, (n + 2) * 4096))
        if n == 1:
            L.append("ds_read_b32 v%d, v%d" % (VF, VCA))
        L += [EXP(X + i) for i in range(7, 12)]
        L.append("s_waitcnt lgkmcnt(%d)" % (4 if n == 1 else 3))
        L.append(SM(OA, Vc[0], X))
        L += [EXP(X + i) for i in range(12, 16)]
        X, Y = S[1], S[0]
        L += [EXP(X), EXP(X + 1), SM(OA, Vc[1], Y + 8)]
        L += [EXP(X + i) for i in range(2, 7)]
        L.append(QK(Y, Kn, QA, NM))
        L += [EXP(X + i) for i in range(7, 12)]
        L.append(SM(OB, Vc[0], X))
        if n == 1:
            L += ["s_waitcnt lgkmcnt(0)", "v_readfirstlane_b32 s6, v%d" % VF, "ds_add_u32 v%d, v%d offset:8" % (VCA, VONE)]
        L += [EXP(X + i) for i in range(12, 16)]
        for ln in L:
            a(ln)
    a.raw(".p2align 6")
    a.label("L_lc")
    tile(2)
    tile(3)
    a("s_cbranch_scc1 L_lexit")
    a("v_add_u32 v%d, 0x4000, v%d" % (AD, AD))
    a.label("L_la")
    tile(0)
    tile(1)
    a("s_cmp_lg_u32 s6, %d" % FULL)
    a("s_cbranch_scc1 L_lspin")
    a.label("L_lok")
    if opt("bal", 0) == 1:
        a("""
        s_setprio %d
        s_xor_b32 s67, s67, 1
        s_cbranch_scc0 L_lok2
        s_setprio %d
        """ % (opt("aprio", 1), opt("aprio", 1) + 1))
        a.label("L_lok2")
    a("""
    v_add_u32 v%d, 4, v%d
    s_add_u32 s66, s66, 0x20000000
    s_branch L_lc
    """ % (VCA, VCA))
    a.label("L_lspin")
    lwait(a, 0, FULL, VF, VCA)
    a("s_branch L_lok")
    a.label("L_lexit")
    a("@stamp 9")
    a("s_nop 1")
    a(SM(OB, W1, S[1] + 8))
    a("""
    s_lshl_b32 s57, s3, 11
    s_xor_b32 s58, s57, 0x2000
    v_add_u32 v40, s57, v%d
    v_add_u32 v41, s58, v%d
    v_lshlrev_b32 v42, 2, v0
    s_lshl_b32 s6, s3, 8
    v_add_u32 v42, s6, v42
    v_xor_b32 v43, 0x400, v42
    v_add_u32 v42, %d, v42
    v_add_u32 v43, %d, v43
    s_lshl_b32 s6, s3, 2
    v_add_u32 v44, s6, v%d
    v_xor_b32 v45, 16, v44
    s_mov_b32 s68, 0
    s_nop 7
    ds_write_b128 v40, %s
    ds_write_b128 v40, %s offset:1024
    ds_write_b32 v42, v%d
    """ % (L16, L16, LX, LX, VC, vr(OB, 4), vr(OB + 4, 4), OB + 8))
    ladd(a, C_CMB, vaddr=44)
    lwait(a, C_CMB, 1, vaddr=45)
    a("""
    ds_read_b32 v5, v%d offset:%d
    ds_read_b32 v%d, v43
    ds_read_b128 %s, v41
    ds_read_b128 %s, v41 offset:1024
    s_mov_b32 s69, 0x5d800000
    s_mov_b32 s70, 0x21800000
    v_mov_b32 v46, 0x207
    s_waitcnt lgkmcnt(2)
    v_readfirstlane_b32 s71, v5
    v_add_f32 v%d, v%d, v%d
    s_waitcnt lgkmcnt(0)
    """ % (VC, 4 * C_MODE, OB + 8, vr(OB, 4), vr(OB + 4, 4), OA + 8, OA + 8, OB + 8))
    for i in range(8):
        a("v_add_f32 v%d, v%d, v%d" % (OA + i, OA + i, OB + i))
    a.label("L_norm")
    a("""
    v_rcp_f32 v47, v%d
    v_cmp_ngt_f32 vcc, s69, v%d
    v_cmp_nlt_f32 s[6:7], s70, v%d
    s_or_b64 vcc, vcc, s[6:7]
    """ % (OA + 8, OA + 8, OA + 8))
    for i in range(8):
        a("v_cmp_class_f32 s[6:7], v%d, v46" % (OA + i))
        a("s_or_b64 vcc, vcc, s[6:7]")
    for i in range(8):
        a("v_mul_f32 v%d, v%d, v47" % (OB + i, OA + i))
    a("""
    s_cmp_lg_u32 s68, 0
    s_cbranch_scc1 L_ostore
    s_cbranch_vccnz L_slow
    """)
    a.label("L_ostore")
    for i in range(4):
        a("v_cvt_pk_bf16_f32 v%d, v%d, v%d" % (OB + 8 + i, OB + 2 * i, OB + 2 * i + 1))
    for i in range(4):
        a("v_min_u32 v%d, -2, v%d" % (OB + 8 + i, OB + 8 + i))
    a("""
    s_cmp_eq_u32 s71, 2
    s_cbranch_scc1 L_ost1
    """)
    lwait(a, C_MODE, 1)
    a("""
    buffer_store_dwordx4 %s, v%d, s[48:51], s56 offen sc1
    s_branch L_ost2
    """ % (vr(OB + 8, 4), L16))
    a.label("L_ost1")
    a("buffer_store_dwordx4 %s, v%d, s[48:51], s56 offen" % (vr(OB + 8, 4), L16))
    a.label("L_ost2")
    ladd(a, C_OS)
    a("@stamp 10")
    BF, AC, WF = 8, 40, 56
    a("""
    v_lshrrev_b32 v1, 4, v0
    v_and_b32 v2, 15, v0
    v_lshlrev_b32 v4, 4, v2
    v_lshl_add_u32 v4, v1, 9, v4
    s_lshl_b32 s60, s4, 1
    s_lshr_b32 s6, s54, 1
    s_add_u32 s60, s60, s6
    s_lshl_b32 s60, s60, 15
    s_lshl_b32 s6, s55, 14
    s_add_u32 s60, s60, s6
    s_and_b32 s6, s54, 1
    s_lshl_b32 s6, s6, 8
    s_add_u32 s60, s60, s6
    s_add_u32 s60, s60, 0x%x
    s_add_u32 s61, s60, 0x1000
    s_add_u32 s62, s60, 0x2000
    s_add_u32 s63, s60, 0x3000
    """ % WS_O)

    def oload(s):
        a("buffer_load_dwordx4 %s, v4, s[48:51], s%d offen%s sc1" % (vr(BF + 4 * s, 4), 60 + (s >> 1), " offset:2048" if s & 1 else ""))
    srd(a, 44, P_OUT, 0x400000)
    a("""
    v_mov_b32 v164, v40
    v_mov_b32 v165, v41
    v_mov_b32 v166, v44
    v_mov_b32 v167, v45
    v_and_b32 v40, 1, v1
    v_lshrrev_b32 v41, 1, v1
    v_lshrrev_b32 v42, 2, v2
    v_lshl_add_u32 v42, v40, 2, v42
    v_lshrrev_b32 v43, 1, v42
    v_lshl_add_u32 v42, v41, 4, v42
    v_lshlrev_b32 v42, 7, v42
    v_and_b32 v44, 3, v0
    v_lshl_add_u32 v42, v44, 3, v42
    s_lshl_b32 s6, s55, 1
    v_xor_b32 v43, s6, v43
    v_lshl_add_u32 v42, v43, 5, v42
    s_lshl_b32 s6, s55, 15
    s_add_u32 s6, s6, %d
    v_add_u32 v160, s6, v42
    v_xor_b32 v161, 32, v160
    v_xor_b32 v162, 64, v160
    v_xor_b32 v163, 96, v160
    v_lshlrev_b32 v2, 11, v2
    v_lshl_add_u32 v2, v40, 5, v2
    v_lshl_add_u32 v2, v41, 4, v2
    s_lshl_b32 s57, s4, 17
    s_lshl_b32 s6, s54, 15
    s_add_u32 s57, s57, s6
    s_lshl_b32 s6, s5, 7
    s_add_u32 s57, s57, s6
    s_lshl_b32 s6, s55, 6
    s_add_u32 s57, s57, s6
    """ % WO)
    a("@stamp 103")
    lwait(a, C_WO, 2)
    a("@stamp 104")
    NPRE = 6

    def wrd(s):
        b = s % NPRE
        for c in range(4):
            a("ds_read_b64_tr_b16 %s, v%d offset:%d" % (vr(WF + 16 * b + 4 * c, 2), 160 + c, 4096 * s))
            a("ds_read_b64_tr_b16 %s, v%d offset:%d" % (vr(WF + 16 * b + 4 * c + 2, 2), 160 + c, 4096 * s + 1024))
    for s in range(NPRE):
        wrd(s)
    lwait(a, C_OS, 8)
    a("@stamp 105")
    for s in range(8):
        oload(s)
    if STAMP and opt("tail", 0):
        a("s_waitcnt vmcnt(0)")
        a("@stamp 106")
    retry = []
    for s in range(8):
        Lc = "L_oc%d" % s
        a.label(Lc)
        a("""
        s_waitcnt vmcnt(%d)
        v_max3_u32 v5, v%d, v%d, v%d
        v_max_u32 v5, v5, v%d
        v_cmp_eq_u32 vcc, -1, v5
        s_cbranch_vccnz L_or%d
        """ % (7 - s, BF + 4 * s, BF + 4 * s + 1, BF + 4 * s + 2, BF + 4 * s + 3, s))
        a.label("L_og%d" % s)
        if s == 0 or s >= NPRE:
            a("s_waitcnt lgkmcnt(%d)" % (0 if s != NPRE else 8))
        b = s % NPRE
        for c in range(4):
            a("v_mfma_f32_16x16x32_bf16 %s, %s, %s, %s" % (vr(AC + 4 * c, 4), vr(WF + 16 * b + 4 * c, 4), vr(BF + 4 * s, 4), "0" if s == 0 else vr(AC + 4 * c, 4)))
        if s + NPRE < 8:
            wrd(s + NPRE)
        retry.append(s)
    a("@stamp 11")
    if STAMP and opt("tail", 0):
        a("s_sub_u32 s90, 20000, s53")
        a("s_add_u32 s90, s90, s78")
    a("""
    s_nop 6
    ds_write_b128 v165, %s
    ds_write_b128 v165, %s offset:1024
    """ % (vr(AC + 8, 4), vr(AC + 12, 4)))
    ladd(a, C_RED, vaddr=166)
    lwait(a, C_RED, 1, vaddr=167)
    a("""
    ds_read_b128 %s, v164
    ds_read_b128 %s, v164 offset:1024
    s_waitcnt lgkmcnt(0)
    """ % (vr(AC + 8, 4), vr(AC + 12, 4)))
    for i in range(8):
        a("v_add_f32 v%d, v%d, v%d" % (AC + i, AC + i, AC + 8 + i))
    for i in range(4):
        a("v_cvt_pk_bf16_f32 v%d, v%d, v%d" % (8 + i, AC + 2 * i, AC + 2 * i + 1))
    a("""
    s_nop 1
    v_permlane16_swap_b32 v8, v10
    v_permlane16_swap_b32 v9, v11
    s_nop 1
    @stamp 108
    buffer_store_dwordx4 v[8:11], v2, s[44:47], s57 offen
    """)
    if STAMP:
        a("s_waitcnt vmcnt(0)")
    a("""
    @stamp 99
    @rstamp 12
    @stampout 13 s3
    s_endpgm
    """)
    for s in retry:
        a.label("L_or%d" % s)
        a("""
        s_mov_b32 s67, %d
        s_sub_u32 s53, s53, 1
        s_cbranch_scc0 L_oq
        s_mov_b32 s53, 0
        s_branch L_og%d
        """ % (s, s))
    a.label("L_oq")
    a("s_waitcnt vmcnt(0)")
    for t in range(8):
        a("""
        v_max3_u32 v5, v%d, v%d, v%d
        v_max_u32 v5, v5, v%d
        v_cmp_eq_u32 vcc, -1, v5
        s_cbranch_vccz L_oq%d
        """ % (BF + 4 * t, BF + 4 * t + 1, BF + 4 * t + 2, BF + 4 * t + 3, t))
        oload(t)
        a.label("L_oq%d" % t)
    a("s_waitcnt vmcnt(0)")
    for t in range(7):
        a("s_cmp_eq_u32 s67, %d" % t)
        a("s_cbranch_scc1 L_oc%d" % t)
    a("s_branch L_oc7")
    a.label("L_slow")
    a("""
    s_mov_b32 s68, 1
    v_mov_b32 v47, 0xff800000
    s_mov_b32 s66, 0
    """)
    a.label("L_slow1")
    a("""
    buffer_load_dwordx4 %s, v%d, s[48:51], s66 offen sc1
    s_waitcnt vmcnt(0)
    %s
    s_add_u32 s66, s66, 0x800
    s_nop 7
    s_nop 3
    """ % (vr(K0, 4), L16, QK(S[0], K0, QA, None)))
    for i in range(0, 16, 2):
        a("v_max3_f32 v47, v47, v%d, v%d" % (S[0] + i, S[0] + i + 1))
    a("""
    s_cmp_lt_u32 s66, 0x20000
    s_cbranch_scc1 L_slow1
    v_mov_b32 v5, v47
    s_nop 1
    v_permlane32_swap_b32 v47, v5
    s_nop 1
    v_max_f32 v47, v47, v5
    s_mov_b32 s66, 0
    """)
    for i in range(16):
        a("v_sub_f32 v%d, 0, v47" % (NM + i))
        a("v_mov_b32 v%d, 0" % (OA + i))
    a.label("L_slow2")
    a("""
    buffer_load_dwordx4 %s, v%d, s[48:51], s66 offen sc1
    s_mov_b64 exec, s[64:65]
    buffer_load_dwordx4 %s, v%d, s[48:51], s66 offen offset:1024 sc1
    buffer_load_dwordx4 %s, v%d, s[48:51], s66 offen offset:1280 sc1
    s_mov_b64 exec, -1
    s_waitcnt vmcnt(0)
    %s
    s_add_u32 s66, s66, 0x800
    s_nop 7
    s_nop 3
    """ % (vr(K0, 4), L16, vr(V0, 4), L16, vr(V1, 4), L16, QK(S[0], K0, QA, NM)))
    for i in range(16):
        a(EXP(S[0] + i))
    a("""
    s_nop 2
    %s
    %s
    s_nop 7
    s_nop 7
    s_cmp_lt_u32 s66, 0x20000
    s_cbranch_scc1 L_slow2
    s_nop 7
    s_branch L_norm
    """ % (SM(OA, V0, S[0]), SM(OA, V1, S[0] + 8)))


def gen_aux(a):
    a.label("L_aux")
    a("s_setprio 3")
    srd(a, 36, P_X, 0x200000)
    a("""
    s_sub_u32 s54, s3, 8
    s_lshr_b32 s55, s5, 1
    s_and_b32 s56, s5, 1
    s_cmp_eq_u32 s56, 0
    s_cselect_b32 s40, s%d, s%d
    s_cselect_b32 s41, s%d, s%d
    s_mov_b32 s42, 16384
    s_mov_b32 s43, 0x00020000
    s_lshl_b32 s57, s4, 16
    s_lshl_b32 s6, s55, 14
    s_add_u32 s57, s57, s6
    s_lshl_b32 s6, s54, 8
    s_add_u32 s57, s57, s6
    s_sub_u32 s74, s54, s75
    s_and_b32 s74, s74, 3
    s_lshl_b32 s58, s74, 14
    s_lshl_b32 s6, s55, 12
    s_add_u32 s58, s58, s6
    s_add_u32 s58, s58, %d
    s_mov_b32 m0, s58
    s_lshl_b32 s59, s54, 12
    """ % (P_WK, P_WV, P_WK + 1, P_WV + 1, XS))
    for p in range(4):
        ldma(a, "v%d" % (8 + p), 36, "s57", 1024 * p)
    setm0(a, "s59")
    for t in range(4):
        ldma(a, "v%d" % L16, 40, "s59", 1024 * t)
    a("@stamp 2")
    a("s_barrier")
    srd(a, 36, P_BK, 0x200000)
    srd(a, 40, P_BV, 0x200000)
    srd(a, 44, P_SH, 4096)
    KI, SH = 64, 104
    a("""
    v_lshrrev_b32 v8, 3, v0
    v_and_b32 v9, 7, v0
    s_lshl_b32 s60, s4, 6
    s_lshl_b32 s7, s54, 4
    s_add_u32 s60, s60, s7
    s_lshl_b32 s6, s60, 10
    s_lshl_b32 s7, s5, 7
    s_add_u32 s6, s6, s7
    v_lshlrev_b32 v10, 10, v8
    v_lshl_add_u32 v10, v9, 4, v10
    v_add_u32 v10, s6, v10
    v_subrev_u32 v11, 0x400, v10
    v_subrev_u32 v12, 0x800, v10
    v_subrev_u32 v13, 0xc00, v10
    v_add_u32 v14, 0x1400, v10
    s_lshl_b32 s61, s5, 9
    v_lshlrev_b32 v15, 6, v9
    """)
    def kvloads():
        a("""
    buffer_load_dwordx4 %s, v10, s[36:39], 0 offen
    buffer_load_dwordx4 %s, v11, s[36:39], 0 offen
    buffer_load_dwordx4 %s, v12, s[36:39], 0 offen
    buffer_load_dwordx4 %s, v13, s[36:39], 0 offen
    buffer_load_dwordx4 %s, v10, s[40:43], 0 offen
    buffer_load_dwordx4 %s, v14, s[36:39], 0 offen offset:3072
    buffer_load_dwordx4 %s, v14, s[36:39], 0 offen offset:2048
    buffer_load_dwordx4 %s, v14, s[36:39], 0 offen offset:1024
    buffer_load_dwordx4 %s, v14, s[36:39], 0 offen
    buffer_load_dwordx4 %s, v14, s[40:43], 0 offen offset:3072
    buffer_load_dwordx4 %s, v15, s[44:47], s61 offen
    buffer_load_dwordx4 %s, v15, s[44:47], s61 offen offset:16
    buffer_load_dwordx4 %s, v15, s[44:47], s61 offen offset:32
    buffer_load_dwordx4 %s, v15, s[44:47], s61 offen offset:48
    """ % tuple([vr(KI + 4 * i, 4) for i in range(10)] + [vr(SH + 4 * i, 4) for i in range(4)]))
    a("""
    v_and_b32 v16, 15, v0
    v_lshrrev_b32 v17, 4, v0
    v_xor_b32 v18, v16, v17
    v_lshlrev_b32 v18, 4, v18
    v_lshl_add_u32 v18, v16, 8, v18
    v_add_u32 v18, s58, v18
    v_xor_b32 v19, 64, v18
    v_xor_b32 v20, 0x80, v18
    v_xor_b32 v21, 0xc0, v18
    v_lshlrev_b32 v22, 8, v17
    v_lshl_add_u32 v22, v16, 3, v22
    v_add_u32 v22, s59, v22
    v_add_u32 v23, s59, v%d
    s_lshl_b32 s6, s74, 2
    v_add_u32 v29, s6, v%d
    """ % (L16, VC))
    a("""
    v_lshrrev_b32 v24, s56, v17
    v_and_b32 v24, 1, v24
    s_xor_b32 s6, s56, 1
    v_lshrrev_b32 v25, s6, v17
    v_and_b32 v25, 1, v25
    v_lshlrev_b32 v24, 9, v24
    v_lshl_add_u32 v24, v25, 3, v24
    v_lshl_add_u32 v24, v16, 4, v24
    s_lshl_b32 s62, s4, 12
    s_lshr_b32 s6, s55, 1
    s_lshl_b32 s6, s6, 11
    s_add_u32 s62, s62, s6
    s_lshl_b32 s6, s56, 10
    s_add_u32 s62, s62, s6
    s_and_b32 s6, s55, 1
    s_lshl_b32 s6, s6, 8
    s_add_u32 s62, s62, s6
    s_and_b32 s63, s4, 3
    s_lshl_b32 s63, s63, 6
    s_lshr_b32 s6, s4, 2
    s_lshl_b32 s6, s6, 3
    s_add_u32 s63, s63, s6
    s_add_u32 s63, s63, s5
    s_lshl_b32 s63, s63, 7
    s_add_u32 s63, s63, 0x%x
    """ % WS_FA)
    a("""
    s_lshl_b32 s7, s54, 11
    s_add_u32 s7, s7, %d
    v_sub_u32 v26, 7, v8
    v_lshlrev_b32 v26, 7, v26
    v_lshl_add_u32 v26, v9, 4, v26
    v_add_u32 v26, s7, v26
    v_lshrrev_b32 v27, 2, v16
    v_lshlrev_b32 v27, 7, v27
    v_lshl_add_u32 v27, v17, 11, v27
    v_and_b32 v28, 2, v0
    v_lshl_add_u32 v27, v28, 9, v27
    v_and_b32 v28, 1, v0
    v_lshl_add_u32 v27, v28, 3, v27
    s_lshl_b32 s7, s54, 5
    s_add_u32 s7, s7, %d
    v_add_u32 v27, s7, v27
    v_lshlrev_b32 v28, 12, v9
    v_lshl_add_u32 v28, v8, 4, v28
    s_lshl_b32 s64, s5, 18
    s_lshl_b32 s6, s54, 16
    s_add_u32 s64, s64, s6
    s_lshl_b32 s6, s4, 7
    s_add_u32 s64, s64, s6
    s_add_u32 s64, s64, 0x%x
    s_lshl_b32 s65, s5, 9
    s_lshl_b32 s6, s54, 7
    s_add_u32 s65, s65, s6
    s_lshl_b32 s6, s4, 2
    s_add_u32 s65, s65, s6
    s_add_u32 s65, s65, 0x%x
    s_mov_b32 s66, 0x05040100
    s_mov_b32 s67, 0x07060302
    s_waitcnt vmcnt(0) lgkmcnt(0)
    s_add_u32 s52, s52, 1
    @stamp 3
    """ % (XB, XB, WS_KVT, WS_FB))
    XF, WF, ACC = 32, 48, 120
    for t in range(4):
        a("ds_read_b128 %s, v%d" % (vr(XF + 4 * t, 4), 18 + t))
        a("ds_read_b64_tr_b16 %s, v22 offset:%d" % (vr(WF + 4 * t, 2), 1024 * t))
        a("ds_read_b64_tr_b16 %s, v22 offset:%d" % (vr(WF + 4 * t + 2, 2), 1024 * t + 128))
    ladd(a, C_S, vaddr=29)
    a("s_cmp_eq_u32 s56, 0")
    a("s_cbranch_scc0 L_jobv")
    for kind in (0, 1):
        if kind:
            a.label("L_jobv")
        for t in range(4):
            a("s_waitcnt lgkmcnt(%d)" % (3 * (3 - t) + 1))
            A, B = (WF, XF) if kind == 0 else (XF, WF)
            a("v_mfma_f32_16x16x32_bf16 %s, %s, %s, %s" % (vr(ACC, 4), vr(A + 4 * t, 4), vr(B + 4 * t, 4), "0" if t == 0 else vr(ACC, 4)))
        if not kind:
            a("s_branch L_jobd")
    a.label("L_jobd")
    a("""
    s_nop 7
    ds_write_b128 v23, %s
    ds_add_rtn_u32 v5, v%d, v%d offset:%d
    s_waitcnt lgkmcnt(0)
    v_readfirstlane_b32 s68, v5
    s_cmp_lg_u32 s68, 3
    s_cbranch_scc1 L_notlast
    """ % (vr(ACC, 4), VC, VONE, 4 * C_J))
    for k in range(4):
        a("ds_read_b128 %s, v%d offset:%d" % (vr(XF + 4 * k, 4), L16, JW + 4096 * k))
    ladd(a, C_J)
    a("s_waitcnt lgkmcnt(1)")
    for i in range(4):
        a("v_add_f32 v%d, v%d, v%d" % (XF + i, XF + i, XF + 4 + i))
        a("v_add_f32 v%d, v%d, v%d" % (XF + 8 + i, XF + 8 + i, XF + 12 + i))
    for i in range(4):
        a("v_add_f32 v%d, v%d, v%d" % (XF + i, XF + i, XF + 8 + i))
    a("""
    v_cvt_pk_bf16_f32 v30, v%d, v%d
    v_cvt_pk_bf16_f32 v31, v%d, v%d
    buffer_store_dwordx2 v[30:31], v24, s[48:51], s62 offen sc1
    """ % (XF, XF + 1, XF + 2, XF + 3))
    ladd(a, C_J)
    a("s_waitcnt vmcnt(0)")
    flag_store(a, "s63", 5)
    a.label("L_notlast")
    a("@stamp 4")
    a("""
    s_lshl_b32 s57, s54, 13
    s_add_u32 s57, s57, 0x%x
    v_lshlrev_b32 v8, 7, v0
    v_mov_b32 v29, 16
    s_mov_b32 m0, s59
    s_and_b32 s6, s54, 1
    s_lshl_b32 s56, s4, 1
    s_add_u32 s56, s56, s6
    s_lshl_b32 s56, s56, 5
    s_lshl_b32 s7, s5, 2
    s_add_u32 s56, s56, s7
    s_and_b32 s7, s54, 2
    s_add_u32 s56, s56, s7
    s_lshl_b32 s56, s56, 10
    s_add_u32 s56, s56, 0x%x
    v_mov_b32 v144, -1
    v_mov_b32 v145, -1
    v_mov_b32 v146, -1
    v_mov_b32 v147, -1
    """ % (WS_FA, WS_O))
    lwait(a, C_J, 5)
    a("s_mov_b64 exec, 0xff")
    gpoll(a, "v8", "s57", 1, 9)
    for i in range(4):
        ldma(a, "v%d" % L16, 48, "s59", 1024 * i, sc1=True)
    a("@stamp 5")
    a("s_mov_b64 exec, 0xffffff")
    gload(a, "v8", "s57", 1, 9)
    a("s_waitcnt vmcnt(1)")
    ladd(a, C_E)
    gpoll(a, "v8", "s57", 1, 9, issued=True)
    lwait(a, C_S + 3, 5)
    a("@stamp 6")

    def convsetup():
        a("""
        s_lshr_b32 s62, s54, 1
        s_and_b32 s63, s54, 1
        s_lshl_b32 s6, s2, 1
        s_add_u32 s69, s6, s62
        s_lshl_b32 s7, s69, 12
        """)
        srd(a, 36, P_SSMK, 4096, "s7")
        a("""
        s_load_dword s70, s[36:37], 0
        s_lshl_b32 s61, s2, 2
        s_load_dword s71, s[%d:%d], s61
        s_add_u32 s72, s7, 0x%x
        s_add_u32 s73, s7, 0x%x
        s_mul_i32 s74, s62, %d
        s_add_u32 s74, s74, %d
        s_mul_i32 s75, s62, %d
        s_add_u32 s75, s75, %d
        """ % (P_SSMD, P_SSMD + 1, WS_KVT, WS_Z, HCH, HB, XCH, XB))

    def kvt():
        T0, T1, T2 = 32, 48, 56
        for u in range(2):
            k = KI + 20 * u
            for d in range(4):
                a("v_perm_b32 v%d, v%d, v%d, s66" % (T0 + 4 * d, k + 4 + d, k + d))
                a("v_perm_b32 v%d, v%d, v%d, s66" % (T0 + 1 + 4 * d, k + 12 + d, k + 8 + d))
                a("v_perm_b32 v%d, v%d, v%d, s67" % (T0 + 2 + 4 * d, k + 4 + d, k + d))
                a("v_perm_b32 v%d, v%d, v%d, s67" % (T0 + 3 + 4 * d, k + 12 + d, k + 8 + d))
            for c in range(8):
                d, hi = c >> 1, c & 1
                a("v_dot2_f32_bf16 v%d, v%d, v%d, 0" % (T1 + c, T0 + 4 * d + 2 * hi, SH + 2 * c))
            for c in range(8):
                d, hi = c >> 1, c & 1
                a("v_dot2_f32_bf16 v%d, v%d, v%d, v%d" % (T1 + c, T0 + 1 + 4 * d + 2 * hi, SH + 1 + 2 * c, T1 + c))
            for d in range(4):
                a("v_lshlrev_b32 v%d, 16, v%d" % (T2 + 2 * d, k + 16 + d))
                a("v_and_b32 v%d, 0xffff0000, v%d" % (T2 + 1 + 2 * d, k + 16 + d))
            for c in range(8):
                a("v_mul_f32 v%d, v%d, v%d" % (T1 + c, T1 + c, T2 + c))
            for d in range(4):
                a("v_cvt_pk_bf16_f32 v%d, v%d, v%d" % (k + d, T1 + 2 * d, T1 + 2 * d + 1))
            a("ds_write_b128 v26, %s offset:%d" % (vr(k, 4), 1024 * u))
        ladd(a, C_KT)
        lwait(a, C_KT, 4)
        for e in range(2):
            a("ds_read_b64_tr_b16 %s, v27 offset:%d" % (vr(KI + 4 * e, 2), 16 * e))
            a("ds_read_b64_tr_b16 %s, v27 offset:%d" % (vr(KI + 4 * e + 2, 2), 16 * e + 512))
        ladd(a, C_KT)
        a("""
        s_add_u32 s6, s64, 0x8000
        s_waitcnt lgkmcnt(1)
        buffer_store_dwordx4 %s, v28, s[48:51], s64 offen sc1
        buffer_store_dwordx4 %s, v28, s[48:51], s6 offen sc1
        buffer_store_dwordx4 v[144:147], v%d, s[48:51], s56 offen sc1
        buffer_store_dwordx4 v[144:147], v%d, s[48:51], s56 offen offset:1024 sc1
        @stamp 7
        """ % (vr(KI, 4), vr(KI + 4, 4), L16, L16))

    def kvgroup(g):
        if g <= 3:
            lwait(a, C_Q + g - 1, 4)
        if g == 7:
            lwait(a, C_QX, 4)
        a("s_add_u32 s59, s59, 0x4000")
        setm0(a, "s59")
        for i in range(4):
            ldma(a, "v%d" % L16, 48, "s59", 1024 * i, sc1=True)

    def hcopy():
        a("""
        s_mul_i32 s60, s63, 4164
        s_add_u32 s60, s60, s74
        s_add_u32 m0, s60, 64
        s_lshl_b32 s61, s63, 1
        """)
        for i in range(4):
            ldma(a, "v%d" % L16, 36, "s61", 1024 * i)
    sched = [1, "l", 2, "p", ("w", 1), ("w", 2), "P", 3, "t", 4, 5, ("w", 3), ("W", "t"), "fb", 6, ("w", 4), 7, ("w", 5), "h", ("w", 6), ("w", 7)]
    issued = []
    for it in sched:
        if isinstance(it, tuple):
            n = sum(c for (nm, c) in issued[[nm for (nm, c) in issued].index(it[1]) + 1:])
            a("s_waitcnt vmcnt(%d)" % n)
            if it[0] == "w":
                ladd(a, C_F + it[1] - 1, vreg=29)
        elif it == "l":
            kvloads()
            convsetup()
            issued.append((it, 14))
        elif it == "p":
            gload(a, "v8", "s57", 1, 9)
            issued.append((it, 1))
        elif it == "P":
            gpoll(a, "v8", "s57", 1, 9, issued=True)
        elif it == "t":
            kvt()
            issued.append((it, 4))
        elif it == "fb":
            flag_store(a, "s65", 5)
            ladd(a, C_T)
            issued.append((it, 1))
        elif it == "h":
            hcopy()
            issued.append((it, 4))
        else:
            kvgroup(it)
            issued.append((it, 4))
    a("""
    s_cmp_lg_u32 s54, 0
    s_cbranch_scc1 L_nofs
    s_lshl_b32 s57, s4, 7
    s_lshl_b32 s6, s5, 3
    s_add_u32 s57, s57, s6
    s_add_u32 s57, s57, 0x%x
    s_getreg_b32 s68, hwreg(HW_REG_XCC_ID, 0, 4)
    v_mov_b32 v8, s52
    v_mov_b32 v9, s68
    """ % WS_FS)
    lwait(a, C_T, 4)
    a("""
    s_mov_b64 exec, 1
    buffer_store_dwordx2 v[8:9], off, s[48:51], s57 sc1
    s_mov_b64 exec, -1
    """)
    a.label("L_nofs")
    a("@stamp 8")
    a("""
    v_lshlrev_b32 v8, 2, v0
    s_lshl_b32 s57, s5, 9
    s_lshr_b32 s6, s4, 3
    s_lshl_b32 s6, s6, 7
    s_add_u32 s57, s57, s6
    s_add_u32 s57, s57, 0x%x
    """ % WS_FB)
    lwait(a, C_KT, 8)
    a("s_mov_b32 exec_hi, 0")
    gpoll(a, "v8", "s57", 1, 10)
    a("""
    v_lshlrev_b32 v2, 6, v0
    s_mul_i32 s60, s63, 3072
    s_add_u32 s60, s60, s75
    s_add_u32 m0, s60, 512
    s_lshl_b32 s61, s63, 5
    s_add_u32 s61, s61, s72
    """)
    ldma(a, "v2", 48, "s61", sc1=True)
    a("s_add_u32 m0, s60, 2048")
    a("s_add_u32 s61, s61, 16")
    ldma(a, "v2", 48, "s61", sc1=True)
    N, G = 12, 13
    a("""
    v_mov_b32 v8, 0
    v_mov_b32 v9, 0
    v_mov_b32 v10, 0
    v_mov_b32 v11, 0
    v_and_b32 v12, 31, v0
    v_lshrrev_b32 v13, 5, v0
    v_mul_u32_u24 v14, 1536, v13
    v_lshl_add_u32 v14, v12, 4, v14
    v_add_u32 v14, s60, v14
    ds_write_b128 v14, v[8:11]
    s_mul_i32 s60, s63, 4160
    s_add_u32 s60, s60, s74
    v_lshlrev_b32 v14, 2, v0
    v_add_u32 v14, s60, v14
    s_waitcnt lgkmcnt(0)
    s_lshl_b32 s70, s70, 16
    v_mov_b32 v15, s70
    v_cmp_eq_u32 vcc, 16, v0
    s_add_u32 s61, s63, 16
    s_nop 1
    v_cndmask_b32 v15, 0, v15, vcc
    v_cmp_gt_u32 vcc, s61, v0
    s_nop 1
    s_mov_b64 exec, vcc
    ds_write_b32 v14, v15
    s_mov_b64 exec, -1
    """)
    a("""
    v_lshrrev_b32 v14, 2, v12
    v_and_b32 v14, 1, v14
    v_lshlrev_b32 v14, 4, v14
    v_lshrrev_b32 v15, 4, v12
    v_lshl_add_u32 v14, v15, 3, v14
    v_lshrrev_b32 v15, 3, v12
    v_and_b32 v15, 1, v15
    v_lshlrev_b32 v15, 2, v15
    v_sub_u32 v14, v14, v15
    v_and_b32 v15, 3, v12
    v_sub_u32 v14, v14, v15
    v_lshlrev_b32 v15, 3, v13
    v_sub_u32 v14, v14, v15
    v_subrev_u32 v14, 16, v14
    v_and_b32 v15, 1, v14
    v_mul_u32_u24 v15, 4162, v15
    v_lshl_add_u32 v14, v14, 1, v15
    v_add_u32 v14, 64, v14
    v_add_u32 v14, s74, v14
    v_mul_u32_u24 v15, 1536, v13
    v_lshl_add_u32 v15, v12, 4, v15
    s_lshl_b32 s60, s63, 9
    s_add_u32 s60, s60, s75
    s_add_u32 s60, s60, %d
    v_add_u32 v15, s60, v15
    s_lshl_b32 s66, 4, s63
    s_lshl_b32 s6, s62, 2
    v_add_u32 v4, s6, v%d
    s_waitcnt vmcnt(0)
    """ % ((32 - 9) * 16, VC))
    ladd(a, C_CV, vaddr=4)
    ACC, TF, XF = 16, 32, 64
    for i in range(16):
        a("v_mov_b32 v%d, 0" % (ACC + i))
    lwait(a, C_CV, 2, vaddr=4)
    a("@stamp 9")
    a("s_setprio %d" % opt("cprio", 0))

    def crd(mm):
        b = mm % 4
        for kk in range(2):
            o = 8 * (2 * mm - kk + 1)
            a("ds_read2_b32 %s, v14 offset0:%d offset1:%d" % (vr(TF + 8 * b + 4 * kk, 2), o, o + 1))
            a("ds_read2_b32 %s, v14 offset0:%d offset1:%d" % (vr(TF + 8 * b + 4 * kk + 2, 2), o + 2, o + 3))
            a("ds_read_b128 %s, v15 offset:%d" % (vr(XF + 8 * b + 4 * kk, 4), kk * 3072 + (9 - mm) * 16))
    crd(0)
    crd(1)
    a.label("L_conv")
    for mm in range(8):
        a("s_waitcnt lgkmcnt(6)")
        b = mm % 4
        for kk in range(2):
            a("v_mfma_f32_32x32x16_bf16 %s, %s, %s, %s" % (vr(ACC, 16), vr(TF + 8 * b + 4 * kk, 4), vr(XF + 8 * b + 4 * kk, 4), vr(ACC, 16)))
        crd(mm + 2)
    a("""
    v_add_u32 v14, 0x200, v14
    v_subrev_u32 v15, 0x80, v15
    s_sub_u32 s66, s66, 1
    s_cmp_lg_u32 s66, 0
    s_cbranch_scc1 L_conv
    @stamp 10
    s_setprio 3
    """)
    a("""
    v_mul_u32_u24 v15, 3072, v13
    v_lshl_add_u32 v15, v12, 4, v15
    s_lshl_b32 s60, s63, 9
    s_add_u32 s60, s60, s75
    s_add_u32 s60, s60, 512
    v_add_u32 v15, s60, v15
    s_waitcnt lgkmcnt(0)
    ds_read_b128 v[32:35], v15
    ds_read_b128 v[36:39], v15 offset:1536
    s_lshl_b32 s60, s62, 4
    s_lshr_b32 s71, s71, s60
    s_lshl_b32 s71, s71, 16
    v_lshlrev_b32 v14, 5, v12
    v_lshl_add_u32 v14, v13, 4, v14
    s_lshl_b32 s60, s63, 11
    s_add_u32 s73, s73, s60
    s_lshl_b32 s60, s63, 9
    s_add_u32 s60, s60, s69
    s_lshl_b32 s60, s60, %d
    s_add_u32 s60, s60, 0x%x
    s_waitcnt lgkmcnt(0)
    """ % (FCS, WS_FC))
    ladd(a, C_C)
    for d in range(8):
        a("v_lshlrev_b32 v%d, 16, v%d" % (40 + 2 * d, 32 + d))
        a("v_and_b32 v%d, 0xffff0000, v%d" % (41 + 2 * d, 32 + d))
    for i in range(16):
        a("v_fmac_f32 v%d, s71, v%d" % (ACC + i, 40 + i))
    for d in range(8):
        a("v_cvt_pk_bf16_f32 v%d, v%d, v%d" % (32 + d, ACC + 2 * d, ACC + 2 * d + 1))
    a("""
    buffer_store_dwordx4 v[32:35], v14, s[48:51], s73 offen sc1
    buffer_store_dwordx4 v[36:39], v14, s[48:51], s73 offen offset:1024 sc1
    """)
    srd(a, 40, P_BQ, 0x200000)
    srd(a, 44, P_OUT, 0x400000)
    a("""
    v_lshrrev_b32 v2, 1, v0
    v_lshlrev_b32 v2, 12, v2
    v_and_b32 v8, 1, v0
    v_lshl_add_u32 v2, v8, 10, v2
    s_lshl_b32 s57, s5, 18
    s_lshr_b32 s7, s4, 4
    s_lshl_b32 s7, s7, 11
    s_add_u32 s57, s57, s7
    s_and_b32 s7, s4, 15
    s_lshl_b32 s7, s7, 6
    s_add_u32 s57, s57, s7
    s_lshl_b32 s7, s54, 4
    s_add_u32 s57, s57, s7
    s_add_u32 s57, s57, 0x%x
    s_lshl_b32 s58, s54, 11
    s_add_u32 s58, s58, %d
    v_and_b32 v8, 15, v0
    v_xor_b32 v9, 7, v8
    v_lshrrev_b32 v10, 4, v0
    v_lshlrev_b32 v11, 10, v9
    v_lshl_add_u32 v11, v10, 4, v11
    v_lshlrev_b32 v12, 11, v9
    v_lshl_add_u32 v12, v10, 4, v12
    s_lshl_b32 s6, s4, 6
    s_lshl_b32 s7, s54, 4
    s_add_u32 s6, s6, s7
    s_lshl_b32 s64, s6, 10
    s_lshl_b32 s7, s5, 7
    s_add_u32 s64, s64, s7
    s_lshl_b32 s65, s6, 11
    s_add_u32 s65, s65, s7
    s_add_u32 s65, s65, 0x400
    v_lshlrev_b32 v13, 3, v8
    v_lshl_add_u32 v13, v10, 8, v13
    v_add_u32 v13, s58, v13
    s_waitcnt vmcnt(0)
    """ % (WS_Z, HB))
    a("@stamp 103")
    flag_store(a, "s60", 5)
    a("""
    buffer_load_dwordx4 v[16:19], v11, s[40:43], s64 offen
    buffer_load_dwordx4 v[20:23], v11, s[40:43], s64 offen offset:64
    s_setprio 0
    s_cmp_lg_u32 s63, 0
    s_cbranch_scc1 L_nowo
    """)
    a("""
    s_cmp_lg_u32 s54, 0
    s_cbranch_scc1 L_nosp
    v_lshlrev_b32 v8, 3, v0
    s_lshl_b32 s60, s4, 7
    s_add_u32 s60, s60, 0x%x
    s_mov_b64 exec, 0xff
    """ % WS_FS)
    gpoll(a, "v8", "s60", 2, 14)
    a("""
    s_mov_b64 exec, 0xff
    v_cmp_ne_u32 vcc, s68, v15
    s_mov_b64 exec, -1
    s_cmp_eq_u64 vcc, 0
    s_cselect_b32 s6, %d, 1
    v_mov_b32 v8, s6
    """ % (2 if opt("ofast", 1) else 1))
    ladd(a, C_MODE, vreg=8)
    a.label("L_nosp")
    srd(a, 36, P_WO, 0x80000)
    a("""
    v_lshrrev_b32 v8, 3, v0
    v_lshrrev_b32 v9, 1, v0
    v_and_b32 v9, 3, v9
    v_xor_b32 v9, v9, v10
    v_and_b32 v14, 1, v0
    v_lshlrev_b32 v8, 10, v8
    v_lshl_add_u32 v8, v14, 4, v8
    v_lshl_add_u32 v8, v9, 5, v8
    s_lshl_b32 s60, s62, 18
    s_lshl_b32 s7, s5, 7
    s_add_u32 s60, s60, s7
    s_lshl_b32 s61, s62, 15
    s_add_u32 s61, s61, %d
    """ % WO)
    lwait(a, C_F + 7, FULL)
    a("@stamp 104")
    for j in range(8):
        a("s_add_u32 m0, s61, %d" % (4096 * j))
        a("s_nop 0")
        for i in range(4):
            ldma(a, "v8", 36, "s60", 1024 * i)
            a("s_add_u32 s60, s60, %d" % (7168 if i < 3 else 7168 + 4096))
    a("s_waitcnt vmcnt(0)")
    ladd(a, C_WO)
    a("@stamp 105")
    a.label("L_nowo")
    a("""
    v_lshlrev_b32 v8, %d, v0
    s_lshr_b32 s60, s4, 4
    s_lshl_b32 s60, s60, 3
    s_add_u32 s60, s60, s5
    s_lshl_b32 s60, s60, %d
    s_add_u32 s60, s60, 0x%x
    """ % (FCS, FCS + 6, WS_FC))
    lwait(a, C_C, 4)
    a("""
    s_or_b32 s6, s2, s54
    s_cmp_lg_u32 s6, 0
    s_cbranch_scc1 L_noc0
    s_mov_b32 s6, 0x%x
    """ % WS_C0)
    flag_store(a, "s6", 5)
    a.label("L_noc0")
    a("@stamp 106")
    gpoll(a, "v8", "s60", 1, 9)
    a("@stamp 11")
    setm0(a, "s58")
    ldma(a, "v2", 48, "s57", sc1=True)
    a("s_add_u32 s57, s57, 0x%x" % (0x20000 - 1024))
    ldma(a, "v2", 48, "s57", 1024, sc1=True)
    a("s_setprio 3")
    for d in range(8):
        a("v_lshlrev_b32 v%d, 16, v%d" % (24 + 2 * d, 16 + d))
        a("v_and_b32 v%d, 0xffff0000, v%d" % (25 + 2 * d, 16 + d))
    a("""
    s_waitcnt vmcnt(0)
    @stamp 107
    ds_read_b64_tr_b16 v[16:17], v13
    ds_read_b64_tr_b16 v[18:19], v13 offset:128
    ds_read_b64_tr_b16 v[20:21], v13 offset:1024
    ds_read_b64_tr_b16 v[22:23], v13 offset:1152
    s_waitcnt lgkmcnt(0)
    """)
    for d in range(8):
        a("v_lshlrev_b32 v%d, 16, v%d" % (40 + 2 * d, 16 + d))
        a("v_and_b32 v%d, 0xffff0000, v%d" % (41 + 2 * d, 16 + d))
    for i in range(16):
        a("v_mul_f32 v%d, v%d, v%d" % (24 + i, 24 + i, 40 + i))
    for d in range(8):
        a("v_cvt_pk_bf16_f32 v%d, v%d, v%d" % (16 + d, 24 + 2 * d, 25 + 2 * d))
    a("""
    @stamp 108
    buffer_store_dwordx4 v[16:19], v12, s[44:47], s65 offen
    buffer_store_dwordx4 v[20:23], v12, s[44:47], s65 offen offset:64
    """)
    if STAMP:
        a("s_waitcnt vmcnt(0)")
    a("""
    @stamp 99
    @rstamp 12
    @stampout 13 s3
    """)


def gen(a):
    a.label(NAME)
    a("""
    s_cmp_ge_u32 s2, 256
    s_cbranch_scc1 L_end
    @rstamp 0
    @stamp 1
    s_load_dwordx4 s[32:35], s[0:1], 96
    s_load_dwordx16 s[8:23], s[0:1], 0
    s_load_dwordx8 s[24:31], s[0:1], 64
    v_lshrrev_b32 v1, 6, v0
    v_and_b32 v0, 63, v0
    @map
    s_and_b32 s4, s2, 31
    v_readfirstlane_b32 s3, v1
    s_lshr_b32 s5, s2, 5
    s_lshr_b32 s75, s4, 3
    s_mul_i32 s75, s75, %d
    v_lshlrev_b32 v%d, 4, v0
    v_mov_b32 v%d, 1
    v_mov_b32 v8, 0x%x
    v_mov_b32 v9, 0x%x
    v_cmp_eq_u32 vcc, 0, v0
    s_mov_b32 s53, 20000
    s_cmp_lg_u32 s3, 0
    v_cndmask_b32 v%d, v8, v9, vcc
    s_cbranch_scc1 L_nocnt
    v_cmp_gt_u32 vcc, 2, v0
    v_lshl_add_u32 v9, v0, 2, v9
    s_nop 0
    v_cndmask_b32 v8, 0, 8, vcc
    v_cmp_eq_u32 vcc, 7, v0
    s_nop 1
    v_cndmask_b32 v8, v8, 64, vcc
    ds_write_b32 v9, v8
    """ % (opt("qrot", 1), L16, VONE, OOR, CNT, VC))
    a.label("L_nocnt")
    a("""
    v_lshrrev_b32 v12, 4, v0
    v_and_b32 v13, 15, v0
    @xsw
    v_lshlrev_b32 v13, 4, v13
    v_lshl_add_u32 v8, v12, 10, v13
    v_xor_b32 v9, 64, v8
    v_xor_b32 v10, 0x80, v8
    v_xor_b32 v11, 0xc0, v8
    v_add_u32 v9, 3072, v9
    v_add_u32 v10, 6144, v10
    v_add_u32 v11, 9216, v11
    s_waitcnt lgkmcnt(0)
    s_load_dword s52, s[%d:%d], 0x%x
    """ % (P_WS, P_WS + 1, WS_C0))
    srd(a, 48, P_WS, WS_BYTES)
    a("s_cmp_ge_u32 s3, 8")
    a("s_cbranch_scc1 L_aux")
    gen_attn(a)
    gen_aux(a)
    a.label("L_end")
    a("s_endpgm")


def main(path):
    a = Asm()
    a.hooks["xsw"] = lambda a: a("v_xor_b32 v13, v13, v12" if opt("xsw", 1) else "s_nop 0")
    a.hooks["map"] = lambda a: a("""
    s_and_b32 s4, s2, 7
    s_lshr_b32 s5, s2, 6
    s_lshl_b32 s5, s5, 3
    s_or_b32 s4, s4, s5
    s_and_b32 s2, s2, 0x38
    s_lshl_b32 s2, s2, 2
    s_or_b32 s2, s2, s4
    """ if opt("map", 1) else "")
    a.hooks["stamp"] = lambda a, i: stamp(a, int(i))
    a.hooks["rstamp"] = lambda a, i: rstamp(a, int(i))
    a.hooks["stampout"] = lambda a, n, w: stamp_out(a, int(n), w)
    hdr = """; concat(MQA attention, H3 ssm-conv) - generated by gen/gen2.py
; @launch grid=(256,1,1) block=(768,1,1) lds=163840
.amdgcn_target "amdgcn-amd-amdhsa--gfx950"
.text
"""
    a.raw(".globl %s\n.p2align 8\n.type %s,@function" % (NAME, NAME))
    gen(a)
    out = hdr + a.text() + '.section .rodata,"a"\n' + kd(NAME, 168)
    open(path, "w").write(out)


if __name__ == "__main__":
    main(sys.argv[1] if len(sys.argv) > 1 else "g2.s")
```
